```python
import torch

def _softmax(x, axis=-1):
    return torch.softmax(x, dim=axis)
def _gelu(x):
    return torch.nn.functional.gelu(x, approximate="tanh")
def _silu(x):
    return torch.nn.functional.silu(x)
def _sigmoid(x):
    return torch.sigmoid(x)
def _layernorm(x, axis=-1, eps=1e-5):
    m = x.mean(dim=axis, keepdim=True)
    v = x.var(dim=axis, keepdim=True, unbiased=False)
    return (x - m) / torch.sqrt(v + eps)
def _scatter_add(tgt, idx, src, axis=0):
    return tgt.clone().index_add_(axis, idx, src)
def _segment_sum(src, seg, n):
    out = torch.zeros((n,) + src.shape[1:], dtype=src.dtype)
    return out.index_add_(0, seg, src)
def _pad(x, pw):
    flat = tuple(v for pair in reversed(pw) for v in pair)
    return torch.nn.functional.pad(x, flat)

kernel_name = 'recurrent_scan__softmax_full_mha__mixer_channel_mlp__prompt'

def setup_inputs():

    _w = (lambda a: (lambda t: t.to(torch.bfloat16) if t.is_floating_point() else t)(torch.as_tensor(a)))
    def _A_setup():
        B, S, D = 1, 2048, 640
        return {
            "x": _w((lambda *s: torch.randn(*s, dtype=torch.bfloat16) * 0.05)(B, S, D)),
            "wqkv": _w((lambda *s: torch.randn(*s, dtype=torch.bfloat16) * 0.05)(D, 3 * D)),
            "wo": _w((lambda *s: torch.randn(*s, dtype=torch.bfloat16) * 0.05)(D, D)),
        }
    _A_in = _A_setup()

    def _B_setup():
        B, S, D, F = 1, 2048, 640, 1728
        return {
            "x": _w((lambda *s: torch.randn(*s, dtype=torch.bfloat16) * 0.05)(B, S, D)),
            "w1": _w((lambda *s: torch.randn(*s, dtype=torch.bfloat16) * 3.2)(D, F) * (D ** -0.5)),
            "b1": _w((lambda *s: torch.randn(*s, dtype=torch.bfloat16) * 1.6)(F)),
            "w2": _w((lambda *s: torch.randn(*s, dtype=torch.bfloat16) * 0.05)(F, D) * (F ** -0.5)),
            "b2": _w((lambda *s: torch.randn(*s, dtype=torch.bfloat16) * 0.05)(D)),
        }
    _B_in = _B_setup()

    return {
        "A_x": _A_in["x"],
        "A_wqkv": _A_in["wqkv"],
        "A_wo": _A_in["wo"],
        "B_x": _B_in["x"],
        "B_w1": _B_in["w1"],
        "B_b1": _B_in["b1"],
        "B_w2": _B_in["w2"],
        "B_b2": _B_in["b2"],
    }

def reference(A_x, A_wqkv, A_wo, B_x, B_w1, B_b1, B_w2, B_b2):
    def _A_ref(x, wqkv, wo):
        B, S, D = x.shape
        H = 32; Dh = D // H
        qkv = (lambda x, *d: x.permute(*d))((x @ wqkv).reshape(B, S, 3, H, Dh), 2, 0, 3, 1, 4)
        q, k, v = qkv[0], qkv[1], qkv[2]
        scale = Dh ** -0.5
        scores = torch.einsum("bhqd,bhkd->bhqk", q, k) * scale
        p = _softmax(scores, axis=-1)
        o = torch.einsum("bhqk,bhkd->bhqd", p, v)
        return (lambda x, *d: x.permute(*d))(o, 0, 2, 1, 3).reshape(B, S, D) @ wo

    def _B_ref(x, w1, b1, w2, b2):
        y = _layernorm(x, axis=-1)
        h = _gelu(torch.einsum("bsd,df->bsf", y, w1) + b1)
        return torch.einsum("bsf,fd->bsd", h, w2) + b2

    x = A_x
    xn = _layernorm(x, axis=-1)
    s = _A_ref(xn, A_wqkv, A_wo)
    g = _silu(_B_ref(xn, B_w1, B_b1, B_w2, B_b2))
    return x + s * g
```

```python
import math

S = 2048; D = 640; H = 32; DH = 20; F = 1728

WS_Q   = 0
WS_K   = 4 << 20
WS_V   = 8 << 20
WS_H   = 12 << 20
WS_W2T = 20 << 20
WS_WOT = 24 << 20
WS_O   = 28 << 20
WS_G   = 32 << 20
WS_SIZE = 36 << 20

KA_X, KA_WQKV, KA_WO, KA_BX, KA_W1, KA_B1, KA_W2, KA_B2, KA_OUT, KA_DBG, KA_WS = [8 * i for i in range(11)]

def f32bits(x):
    import struct
    return struct.unpack("<I", struct.pack("<f", x))[0]

class Asm:
    def __init__(self):
        self.lines = []
    def __call__(self, s):
        for l in s.strip("\n").split("\n"):
            l = l.strip()
            if not l:
                continue
            if l.endswith(":") or l.startswith("."):
                self.lines.append(l)
            else:
                self.lines.append("    " + l)
    def label(self, name):
        self.lines.append(name + ":")
    def nop(self, n):
        while n > 0:
            k = min(n, 16)
            self.lines.append(f"    s_nop {k-1}")
            n -= k
    def text(self):
        return "\n".join(self.lines) + "\n"

def vr(a, n=1):
    return f"v{a}" if n == 1 else f"v[{a}:{a+n-1}]"
def sr(a, n=1):
    return f"s{a}" if n == 1 else f"s[{a}:{a+n-1}]"

def srd(a, d, lo, size):
    a(f"""
    s_mov_b32 s{d}, s{lo}
    s_mov_b32 s{d+1}, s{lo+1}
    s_mov_b32 s{d+2}, {size}
    s_mov_b32 s{d+3}, 0x00020000
    """)

def kd(name, vgpr, sgpr=102):
    acc = (vgpr + 3) // 4 * 4
    return f""".p2align 6
.amdhsa_kernel {name}
  .amdhsa_next_free_vgpr {vgpr}
  .amdhsa_next_free_sgpr {sgpr}
  .amdhsa_accum_offset {acc}
  .amdhsa_group_segment_fixed_size 0
  .amdhsa_kernarg_size 88
  .amdhsa_user_sgpr_count 2
  .amdhsa_user_sgpr_kernarg_segment_ptr 1
  .amdhsa_system_sgpr_workgroup_id_x 1
  .amdhsa_float_denorm_mode_32 3
.end_amdhsa_kernel
"""

def khead(name):
    return f""".globl {name}
.p2align 8
.type {name},@function
{name}:
"""
```

```python
from common import *

XBASE = 96 * 1024
LDS_K1 = 144 * 1024
NIT = 10

def gen_k1():
    a = Asm()
    a(khead("k1_kernel"))
    a(f"""
    s_cmp_ge_u32 s2, 256
    s_cbranch_scc1 K1_END
    s_load_dwordx2 s[4:5], s[0:1], {KA_X}
    s_load_dwordx2 s[28:29], s[0:1], {KA_WQKV}
    s_load_dwordx2 s[30:31], s[0:1], {KA_W1}
    s_load_dwordx2 s[26:27], s[0:1], {KA_B1}
    s_load_dwordx2 s[24:25], s[0:1], {KA_WS}
    s_load_dwordx2 s[32:33], s[0:1], {KA_W2}
    s_load_dwordx2 s[34:35], s[0:1], {KA_WO}
    v_and_b32 v1, 63, v0
    v_lshrrev_b32 v2, 6, v0
    s_and_b32 s3, s2, 7
    s_lshr_b32 s36, s2, 3
    v_readfirstlane_b32 s38, v2
    s_lshr_b32 s37, s36, 4
    s_lshl_b32 s37, s37, 3
    s_add_u32 s37, s37, s3          ; nt
    s_and_b32 s52, s36, 15
    s_mov_b32 s36, s52              ; mt
    s_waitcnt lgkmcnt(0)
    """)
    srd(a, 16, 24, WS_SIZE)
    a("""
    s_cmp_eq_u32 s37, 15
    s_cbranch_scc1 K1_TRANS
    """)
    srd(a, 8, 4, S * D * 2)
    srd(a, 20, 26, F * 2)
    a(f"""
    s_and_b32 s39, s38, 1           ; tg
    s_lshr_b32 s40, s38, 1          ; fg
    s_lshl_b32 s41, s39, 1
    s_add_u32 s41, s41, s40
    s_and_b32 s41, s41, 3           ; rot
    s_cmp_ge_u32 s37, 8
    s_cselect_b32 s42, 1, 0         ; is_h
    s_cselect_b32 s12, s30, s28
    s_cselect_b32 s13, s31, s29
    s_mov_b32 s14, {D*3*D*2}
    s_cselect_b32 s14, {D*F*2}, s14
    s_mov_b32 s15, 0x00020000
    s_mov_b32 s43, {3*D*2}
    s_cselect_b32 s43, {F*2}, s43
    s_cselect_b32 s44, 8, 0
    s_sub_u32 s44, s37, s44
    s_lshl_b32 s44, s44, 8
    s_lshl_b32 s45, s38, 11
    s_add_u32 s45, s45, {XBASE}     ; M0 base X
    s_lshl_b32 s46, s38, 12         ; M0 base W
    s_lshl_b32 s49, s43, 6
    s_lshl_b32 s50, s40, 6
    s_add_u32 s50, s50, s44
    """)
    a(f"""
    s_mov_b32 s51, 0
    s_cmp_ge_u32 s50, 640
    s_cselect_b32 s51, 1, s51
    s_cmp_ge_u32 s50, 1280
    s_cselect_b32 s51, 2, s51
    s_cmp_eq_u32 s42, 1
    s_cselect_b32 s51, 3, s51
    s_mul_i32 s53, s51, 640
    s_cselect_b32 s53, 0, s53
    s_mov_b32 s54, {3*D}
    s_cselect_b32 s54, {F}, s54
    s_sub_u32 s53, s50, s53
    s_cmp_lt_u32 s50, s54
    s_cselect_b32 s54, 1, 0
    """)
    for jj in range(2):
        a(f"""
        s_lshl_b32 s55, s38, 4
        s_add_u32 s55, s55, {8*jj}
        v_lshrrev_b32 v2, 3, v1
        v_add_u32 v2, s55, v2
        v_lshrrev_b32 v3, 1, v2
        v_and_b32 v3, 7, v3
        v_and_b32 v4, 7, v1
        v_xor_b32 v3, v3, v4            ; c
        s_lshl_b32 s55, s36, 7
        v_add_u32 v2, s55, v2
        v_mul_u32_u24 v2, 1280, v2
        v_lshl_add_u32 v{8+jj}, v3, 4, v2
        """)
    for jj in range(4):
        a(f"""
        s_lshl_b32 s55, s38, 3
        s_add_u32 s55, s55, {2*jj}
        v_lshrrev_b32 v2, 5, v1
        v_add_u32 v2, s55, v2           ; k
        v_and_b32 v3, 3, v2
        v_and_b32 v4, 31, v1
        v_lshrrev_b32 v5, 2, v4
        v_xor_b32 v5, v5, v3            ; blk
        v_and_b32 v4, 3, v4
        v_lshl_add_u32 v4, v5, 2, v4    ; csrc
        v_mul_lo_u32 v2, v2, s43
        v_lshl_add_u32 v2, v4, 4, v2
        s_lshl_b32 s55, s44, 1
        v_add_u32 v{10+jj}, s55, v2
        """)
    a(f"""
    v_and_b32 v2, 31, v1
    v_lshrrev_b32 v3, 5, v1
    s_lshl_b32 s55, s39, 6
    v_add_u32 v2, s55, v2           ; tok
    v_lshrrev_b32 v4, 1, v2
    v_and_b32 v4, 7, v4
    v_xor_b32 v4, v4, v3            ; g ^ sw
    v_lshlrev_b32 v2, 7, v2
    v_lshl_add_u32 v2, v4, 4, v2
    v_add_u32 v2, {XBASE}, v2
    """)
    for p in range(4):
        a(f"""
        s_add_u32 s55, s41, {p}
        s_and_b32 s55, s55, 3
        s_lshl_b32 s55, s55, 5
        v_xor_b32 v{14+p}, s55, v2
        """)
    a(f"""
    v_and_b32 v2, 15, v1
    v_lshrrev_b32 v3, 2, v2         ; r
    v_and_b32 v4, 3, v2             ; c4
    v_lshrrev_b32 v5, 4, v1         ; G
    v_and_b32 v6, 1, v5             ; half
    v_lshrrev_b32 v5, 1, v5         ; kgrp
    v_lshl_add_u32 v5, v5, 3, v3    ; 8kgrp + r
    v_lshlrev_b32 v5, 9, v5
    v_lshl_add_u32 v5, v6, 5, v5
    v_lshl_add_u32 v5, v4, 3, v5
    """)
    for ft in range(2):
        a(f"""
        s_lshl_b32 s55, s40, 1
        s_add_u32 s55, s55, {ft}
        v_xor_b32 v6, s55, v3
        v_lshl_add_u32 v6, v6, 6, v5
        """)
        for p in range(4):
            a(f"""
            s_add_u32 s55, s41, {p}
            s_and_b32 s55, s55, 3
            s_lshl_b32 s55, s55, 13
            v_add_u32 v{18+ft*4+p}, s55, v6
            v_add_u32 v{26+ft*4+p}, 0x10000, v{18+ft*4+p}
            """)
    for r in range(34, 40):
        a(f"v_mov_b32 v{r}, 0")
    a("v_mov_b32 v40, 0x3f803f80")
    for r in range(80, 144):
        a(f"v_mov_b32 v{r}, 0")
    a("""
    s_mov_b32 s47, 0
    s_mov_b32 s48, 0
    """)

    def dma(stage):
        for jj in range(2):
            a(f"""
            s_add_u32 m0, s45, {stage*16384 + jj*1024}
            s_nop 0
            buffer_load_dwordx4 v{8+jj}, s[8:11], s47 offen lds
            """)
        for jj in range(4):
            a(f"""
            s_add_u32 m0, s46, {stage*32768 + jj*1024}
            s_nop 0
            buffer_load_dwordx4 v{10+jj}, s[12:15], s48 offen lds
            """)
        a("""
        s_add_u32 s47, s47, 128
        s_add_u32 s48, s48, s49
        """)

    XF = lambda buf, tt: 44 + buf * 8 + tt * 4
    WF = lambda buf, ft: 60 + buf * 8 + ft * 4
    ACC = lambda ft, tt: 80 + (ft * 2 + tt) * 16

    def reads(it, p):
        st = it % 3
        buf = p & 1
        for tt in range(2):
            a(f"ds_read_b128 {vr(XF(buf,tt),4)}, v{14+p} offset:{st*16384 + tt*4096}")
        for ft in range(2):
            ar = (18 if st < 2 else 26) + ft * 4 + p
            off = (st % 2) * 32768 if st < 2 else 0
            a(f"ds_read_b64_tr_b16 {vr(WF(buf,ft),2)}, v{ar} offset:{off}")
            a(f"ds_read_b64_tr_b16 {vr(WF(buf,ft)+2,2)}, v{ar} offset:{off+2048}")

    def mainloop(vmode):
        a("s_waitcnt vmcnt(6)")
        a("s_barrier")
        reads(0, 0)
        for it in range(NIT):
            if it >= 1 and it + 2 < NIT:
                a("s_barrier")
            if it + 2 < NIT:
                dma((it + 2) % 3)
            for p in range(4):
                nxt = True
                if p < 3:
                    reads(it, p + 1)
                elif it < NIT - 1:
                    reads(it + 1, 0)
                else:
                    nxt = False
                a(f"s_waitcnt lgkmcnt({6 if nxt else 0})")
                buf = p & 1
                dots = []
                if p == 0:
                    for tt in range(2):
                        for i in range(4):
                            dots.append(f"v_dot2_f32_bf16 v{34+tt}, v{XF(buf,tt)+i}, v40, v{34+tt}")
                            dots.append(f"v_dot2_f32_bf16 v{36+tt}, v{XF(buf,tt)+i}, v{XF(buf,tt)+i}, v{36+tt}")
                if p <= 1:
                    for ft in range(2):
                        for i in range(4):
                            dots.append(f"v_dot2_f32_bf16 v{38+ft}, v{WF(buf,ft)+i}, v40, v{38+ft}")
                k = 0
                nd = (len(dots) + 3) // 4
                for ft in range(2):
                    for tt in range(2):
                        if vmode:
                            a(f"v_mfma_f32_32x32x16_bf16 {vr(ACC(ft,tt),16)}, {vr(XF(buf,tt),4)}, {vr(WF(buf,ft),4)}, {vr(ACC(ft,tt),16)}")
                        else:
                            a(f"v_mfma_f32_32x32x16_bf16 {vr(ACC(ft,tt),16)}, {vr(WF(buf,ft),4)}, {vr(XF(buf,tt),4)}, {vr(ACC(ft,tt),16)}")
                        for d in dots[k * nd:(k + 1) * nd]:
                            a(d)
                        k += 1
                if p == 1 and it < NIT - 1:
                    a(f"s_waitcnt vmcnt({6 if it + 2 < NIT else 0})")
                    a("s_barrier")

    dma(0)
    dma(1)
    a("""
    s_cmp_eq_u32 s51, 2
    s_cbranch_scc1 K1_LOOPV
    """)
    mainloop(False)
    a("s_branch K1_EPI")
    a.label("K1_LOOPV")
    mainloop(True)
    a.label("K1_EPI")

    a(f"""
    s_barrier
    s_lshl_b32 s55, s39, 3
    s_add_u32 s55, s55, s40
    s_lshl_b32 s55, s55, 9          ; (tg*8+fg)*512
    v_lshl_add_u32 v2, v1, 3, s55
    v_mov_b32 v4, v34
    v_mov_b32 v5, v36
    v_mov_b32 v6, v35
    v_mov_b32 v7, v37
    ds_write_b64 v2, v[4:5]
    ds_write_b64 v2, v[6:7] offset:2048
    s_lshl_b32 s55, s40, 2
    s_add_u32 s55, s55, s39
    s_lshl_b32 s55, s55, 8          ; (fg*4+tg)*256
    v_lshl_add_u32 v2, v1, 2, s55
    ds_write_b32 v2, v38 offset:8192
    ds_write_b32 v2, v39 offset:{8192+512}
    s_waitcnt lgkmcnt(0)
    s_barrier
    """)
    a(f"""
    v_and_b32 v2, 31, v1
    s_lshl_b32 s55, s39, 12
    v_lshl_add_u32 v3, v2, 3, s55
    """)
    for tt in range(2):
        for i in range(8):
            a(f"ds_read_b64 {vr(144+tt*16+2*i,2)}, v3 offset:{tt*2048 + i*256}")
    a(f"""
    s_lshl_b32 s55, s40, 10
    v_lshl_add_u32 v3, v2, 2, s55
    """)
    for ft in range(2):
        for i in range(4):
            a(f"ds_read_b32 v{176+ft*4+i}, v3 offset:{8192 + ft*512 + i*128}")
    a(f"""
    v_mov_b32 v184, 0
    v_mov_b32 v185, 0
    s_cmp_eq_u32 s51, 3
    s_cbranch_scc0 K1_NOBIAS
    v_add_u32 v4, s50, v2
    v_lshlrev_b32 v4, 1, v4
    buffer_load_ushort v184, v4, s[20:23], 0 offen
    buffer_load_ushort v185, v4, s[20:23], 0 offen offset:64
    s_waitcnt vmcnt(0)
    v_lshlrev_b32 v184, 16, v184
    v_lshlrev_b32 v185, 16, v185
    """)
    a.label("K1_NOBIAS")
    a("s_waitcnt lgkmcnt(0)")
    for tt in range(2):
        b = 144 + tt * 16
        for i in range(1, 8):
            a(f"v_add_f32 v{b}, v{b}, v{b+2*i}")
            a(f"v_add_f32 v{b+1}, v{b+1}, v{b+2*i+1}")
    for ft in range(2):
        b = 176 + ft * 4
        a(f"v_add_f32 v{b}, v{b}, v{b+1}")
        a(f"v_add_f32 v{b+2}, v{b+2}, v{b+3}")
        a(f"v_add_f32 v{b}, v{b}, v{b+2}")
    def bf16r(dst, src):
        a(f"v_cvt_pk_bf16_f32 v{dst}, v{src}, v{src}")
        a(f"v_lshlrev_b32 v{dst}, 16, v{dst}")
    qscale = (DH ** -0.5) * math.log2(math.e)
    a(f"""
    s_mov_b32 s56, {f32bits(1.0/640)}
    s_mov_b32 s57, {f32bits(1e-5)}
    s_mov_b32 s58, 1.0
    s_cmp_eq_u32 s51, 0
    s_cselect_b32 s58, {f32bits(qscale)}, s58
    """)
    for tt in range(2):
        b = 144 + tt * 16
        a(f"""
        v_mul_f32 v{b}, s56, v{b}              ; mean
        v_mul_f32 v{b+1}, s56, v{b+1}
        v_fma_f32 v{b+1}, -v{b}, v{b}, v{b+1}  ; var
        v_max_f32 v{b+1}, 0, v{b+1}
        """)
        bf16r(b + 2, b)
        bf16r(b + 3, b + 1)
        a(f"v_add_f32 v{b+3}, s57, v{b+3}")
        bf16r(b + 3, b + 3)
        a(f"v_sqrt_f32 v{b+3}, v{b+3}")
        a("s_nop 0")
        bf16r(b + 3, b + 3)
        a(f"v_rcp_f32 v{b+4}, v{b+3}")
        a("s_nop 0")
        a(f"""
        v_fma_f32 v{b+5}, -v{b+3}, v{b+4}, 1.0
        v_fma_f32 v{b+4}, v{b+4}, v{b+5}, v{b+4}
        v_mul_f32 v{b+5}, v{b+2}, v{b+4}       ; m_bf/den
        ; LN2
        v_sub_f32 v{b+6}, v{b}, v{b+2}
        v_mul_f32 v{b+6}, v{b+6}, v{b+4}       ; m2
        """)
        bf16r(b + 6, b + 6)
        a(f"""
        v_mul_f32 v{b+7}, v{b+1}, v{b+4}
        v_mul_f32 v{b+7}, v{b+7}, v{b+4}       ; var2
        """)
        bf16r(b + 7, b + 7)
        a(f"v_add_f32 v{b+7}, s57, v{b+7}")
        bf16r(b + 7, b + 7)
        a(f"v_sqrt_f32 v{b+7}, v{b+7}")
        a("s_nop 0")
        bf16r(b + 7, b + 7)
        a(f"v_rcp_f32 v{b+8}, v{b+7}")
        a("s_nop 0")
        a(f"""
        v_fma_f32 v{b+9}, -v{b+7}, v{b+8}, 1.0
        v_fma_f32 v{b+8}, v{b+8}, v{b+9}, v{b+8}   ; 1/den2
        v_mul_f32 v{186+tt}, s58, v{b+4}
        v_mul_f32 v{188+tt}, s58, v{b+5}
        v_sub_f32 v{188+tt}, 0, v{188+tt}
        v_mul_f32 v{b+10}, v{b+4}, v{b+8}
        v_add_f32 v{b+11}, v{b+5}, v{b+6}
        v_mul_f32 v{b+11}, v{b+11}, v{b+8}
        v_sub_f32 v{b+11}, 0, v{b+11}
        """)
    a("""
    s_cmp_eq_u32 s51, 3
    s_cbranch_scc0 K1_NOTH1
    v_mov_b32 v186, v154
    v_mov_b32 v188, v155
    v_mov_b32 v187, v170
    v_mov_b32 v189, v171
    """)
    a.label("K1_NOTH1")
    a("""
    s_cmp_eq_u32 s54, 0
    s_cbranch_scc1 K1_END
    """)
    a(f"""
    s_lshl_b32 s55, s38, 11
    s_add_u32 s55, s55, 16384
    v_and_b32 v2, 31, v1
    v_lshrrev_b32 v3, 5, v1
    v_lshl_add_u32 v4, v2, 2, s55       ; + lane31*4
    v_lshl_add_u32 v5, v3, 4, s55
    s_cmp_eq_u32 s51, 2
    s_cbranch_scc1 K1_EPIV
    """)
    a(f"""
    ds_write_b32 v4, v176
    ds_write_b32 v4, v180 offset:128
    ds_write_b32 v4, v184 offset:256
    ds_write_b32 v4, v185 offset:384
    s_waitcnt lgkmcnt(0)
    """)
    for ft in range(2):
        for q in range(4):
            a(f"ds_read_b128 {vr(144+ft*16+q*4,4)}, v5 offset:{ft*128+q*32}")
            a(f"ds_read_b128 {vr(192+ft*16+q*4,4)}, v5 offset:{256+ft*128+q*32}")
    a("s_waitcnt lgkmcnt(0)")
    for ft in range(2):
        for tt in range(2):
            for r in range(16):
                a(f"v_fma_f32 v{224+r}, v{188+tt}, v{144+ft*16+r}, v{192+ft*16+r}")
            for r in range(16):
                a(f"v_fma_f32 v{ACC(ft,tt)+r}, v{186+tt}, v{ACC(ft,tt)+r}, v{224+r}")
    a("""
    s_cmp_eq_u32 s51, 3
    s_cbranch_scc1 K1_EPIH
    """)
    a(f"""
    s_lshl_b32 s55, s36, 2
    s_lshl_b32 s56, s39, 1
    s_add_u32 s55, s55, s56
    s_mul_i32 s55, s55, 1280
    s_cmp_eq_u32 s51, 1
    s_cselect_b32 s56, {WS_K}, {WS_Q}
    s_add_u32 s55, s55, s56
    s_mov_b32 s57, 81920
    """)
    for ft in range(2):
        for q in range(4):
            a(f"""
            v_lshlrev_b32 v6, 2, v3
            v_add_u32 v6, s53, v6
            v_add_u32 v6, {32*ft+8*q}, v6      ; f0
            v_mul_u32_u24 v7, 3277, v6
            v_lshrrev_b32 v7, 16, v7           ; h
            v_mul_u32_u24 v8, 20, v7
            v_sub_u32 v8, v6, v8               ; d0
            v_mul_lo_u32 v7, v7, s57
            v_lshrrev_b32 v9, 3, v8
            v_lshlrev_b32 v9, 9, v9            ; (d0>>3)*512
            v_and_b32 v10, 7, v8
            v_lshl_add_u32 v9, v10, 1, v9
            v_lshl_add_u32 v9, v2, 4, v9
            v_lshlrev_b32 v10, 3, v2
            v_add_u32 v10, 1024, v10
            v_cmp_lt_u32 vcc, 15, v8
            s_nop 1
            v_cndmask_b32 v9, v9, v10, vcc
            v_add_u32 v9, v9, v7
            """)
            for tt in range(2):
                b = ACC(ft, tt) + 4 * q
                a(f"""
                v_cvt_pk_bf16_f32 v12, v{b}, v{b+1}
                v_cvt_pk_bf16_f32 v13, v{b+2}, v{b+3}
                buffer_store_dwordx2 v[12:13], v9, s[16:19], s55 offen offset:{tt*1280}
                s_nop 1
                """)
    a("s_branch K1_END")
    a.label("K1_EPIH")
    c0 = -2.0 * math.sqrt(2.0 / math.pi) * math.log2(math.e)
    c1 = c0 * 0.044715
    a(f"""
    s_mov_b32 s56, {f32bits(c0)}
    s_mov_b32 s57, {f32bits(c1)}
    v_mov_b32 v11, s56
    s_lshl_b32 s55, s36, 2
    s_lshl_b32 s58, s39, 1
    s_add_u32 s55, s55, s58            ; T0
    s_mul_i32 s55, s55, {108*1024}
    s_lshr_b32 s58, s53, 4
    s_lshl_b32 s58, s58, 10
    s_add_u32 s55, s55, s58
    s_add_u32 s55, s55, {WS_H}
    s_add_u32 s59, s55, {108*1024}
    v_lshlrev_b32 v9, 4, v1
    """)
    for ft in range(2):
        for tt in range(2):
            b = ACC(ft, tt)
            for r in range(16):
                a(f"v_mul_f32 v{224+r}, v{b+r}, v{b+r}")
            for r in range(16):
                a(f"v_fma_f32 v{224+r}, v{224+r}, s57, v11")
            for r in range(16):
                a(f"v_mul_f32 v{224+r}, v{224+r}, v{b+r}")
            for r in range(16):
                a(f"v_exp_f32 v{224+r}, v{224+r}")
            for r in range(16):
                a(f"v_add_f32 v{224+r}, 1.0, v{224+r}")
            for r in range(16):
                a(f"v_rcp_f32 v{224+r}, v{224+r}")
            for r in range(16):
                a(f"v_mul_f32 v{224+r}, v{224+r}, v{b+r}")
            for i in range(8):
                a(f"v_cvt_pk_bf16_f32 v{144+i}, v{224+2*i}, v{224+2*i+1}")
            so = "s55" if tt == 0 else "s59"
            a(f"""
            buffer_store_dwordx4 v[144:147], v9, s[16:19], {so} offen offset:{ft*2048}
            buffer_store_dwordx4 v[148:151], v9, s[16:19], {so} offen offset:{ft*2048+1024}
            s_nop 1
            """)
    a("s_branch K1_END")
    a.label("K1_EPIV")
    a(f"""
    ds_write_b32 v4, v186
    ds_write_b32 v4, v187 offset:128
    ds_write_b32 v4, v188 offset:256
    ds_write_b32 v4, v189 offset:384
    s_waitcnt lgkmcnt(0)
    """)
    for tt in range(2):
        for q in range(4):
            a(f"ds_read_b128 {vr(144+tt*16+q*4,4)}, v5 offset:{tt*128+q*32}")
            a(f"ds_read_b128 {vr(192+tt*16+q*4,4)}, v5 offset:{256+tt*128+q*32}")
    a("s_waitcnt lgkmcnt(0)")
    a(f"""
    s_lshl_b32 s55, s36, 3
    s_lshl_b32 s56, s39, 2
    s_add_u32 s55, s55, s56
    s_mul_i32 s55, s55, 640
    s_add_u32 s55, s55, {WS_V}
    s_mov_b32 s57, 81920
    """)
    for ft in range(2):
        a(f"""
        v_add_u32 v6, s53, v2
        v_add_u32 v6, {32*ft}, v6          ; fcol
        v_mul_u32_u24 v7, 3277, v6
        v_lshrrev_b32 v7, 16, v7           ; h
        v_mul_u32_u24 v8, 20, v7
        v_sub_u32 v8, v6, v8               ; d
        v_mul_lo_u32 v7, v7, s57
        v_mul_u32_u24 v9, 320, v3
        v_lshl_add_u32 v9, v8, 4, v9
        v_add_u32 v9, v9, v7
        """)
        cs = 176 + ft * 4
        for tt in range(2):
            b = ACC(ft, tt)
            for r in range(16):
                a(f"v_mul_f32 v{224+r}, v{192+tt*16+r}, v{cs}")
            for r in range(16):
                a(f"v_fma_f32 v{224+r}, v{144+tt*16+r}, v{b+r}, v{224+r}")
            for i in range(8):
                a(f"v_cvt_pk_bf16_f32 v{240+i}, v{224+2*i}, v{224+2*i+1}")
            a(f"""
            buffer_store_dwordx4 v[240:243], v9, s[16:19], s55 offen offset:{tt*1280}
            buffer_store_dwordx4 v[244:247], v9, s[16:19], s55 offen offset:{tt*1280+640}
            s_nop 1
            """)
    a("s_branch K1_END")

    a.label("K1_TRANS")
    srd(a, 8, 32, F * D * 2)
    srd(a, 12, 34, D * D * 2)
    a(f"""
    s_lshl_b32 s39, s36, 3
    s_add_u32 s39, s39, s38         ; gw
    v_and_b32 v2, 31, v1
    v_lshrrev_b32 v3, 5, v1
    v_mul_u32_u24 v4, {4*1280}, v3
    v_lshl_add_u32 v4, v2, 1, v4
    v_mul_u32_u24 v5, {8*1280}, v3
    v_lshl_add_u32 v5, v2, 1, v5
    v_lshlrev_b32 v6, 4, v1
    s_mov_b32 s40, 0                ; nt
    s_mov_b32 s41, s39              ; ks
    """)
    def trans_loop(name, nks, nfr, srdn, voff, jmap, wsbase):
        a.label(f"{name}_NORM")
        a(f"""
        s_cmp_lt_u32 s41, {nks}
        s_cbranch_scc1 {name}_GO
        s_sub_u32 s41, s41, {nks}
        s_add_u32 s40, s40, 1
        s_branch {name}_NORM
        """)
        a.label(f"{name}_GO")
        a(f"""
        s_cmp_ge_u32 s40, 20
        s_cbranch_scc1 {name}_DONE
        s_mul_i32 s42, s41, {16*1280}
        s_lshl_b32 s43, s40, 6
        s_add_u32 s42, s42, s43
        """)
        for j in range(8):
            a(f"s_add_u32 s43, s42, {jmap(j)*1280}")
            a(f"buffer_load_ushort v{24+j}, v{voff}, s[{srdn}:{srdn+3}], s43 offen")
        a(f"""
        s_mul_i32 s42, s40, {nks}
        s_add_u32 s42, s42, s41
        s_lshl_b32 s42, s42, 10
        s_add_u32 s42, s42, {wsbase}
        s_waitcnt vmcnt(0)
        v_lshl_or_b32 v16, v25, 16, v24
        v_lshl_or_b32 v17, v27, 16, v26
        v_lshl_or_b32 v18, v29, 16, v28
        v_lshl_or_b32 v19, v31, 16, v30
        buffer_store_dwordx4 v[16:19], v6, s[16:19], s42 offen
        s_add_u32 s41, s41, 128
        s_nop 1
        s_branch {name}_NORM
        """)
        a.label(f"{name}_DONE")
    trans_loop("K1_T2", 108, 2160, 8, 4, lambda j: (j & 3) + 8 * (j >> 2), WS_W2T)
    a("""
    s_mov_b32 s40, 0
    s_mov_b32 s41, s39
    """)
    trans_loop("K1_TO", 40, 800, 12, 5, lambda j: j, WS_WOT)
    a.label("K1_END")
    a("s_endpgm")
    return a.text(), kd("k1_kernel", 256)
```

```python
from common import *

LDS_K2 = 160 * 1024

def gen_k2():
    a = Asm()
    a(khead("k2_kernel"))
    SA, SB = 16, 32
    S_ = [16, 32]
    P_ = [48, 56]
    O_ = [64, 80]
    QL = [96, 104]
    KL = [112, 120]
    VF = [128, 136]
    vKA, vKH, vVA = 8, 9, 10
    MEFF = [12, 13]
    a(f"""
    s_cmp_ge_u32 s2, 256
    s_cbranch_scc1 K2_END
    s_load_dwordx2 s[24:25], s[0:1], {KA_WS}
    v_and_b32 v1, 63, v0
    v_lshrrev_b32 v2, 6, v0
    s_and_b32 s36, s2, 31              ; head
    s_lshr_b32 s37, s2, 5              ; qb
    v_readfirstlane_b32 s38, v2        ; w
    v_and_b32 v2, 31, v1               ; n
    v_lshrrev_b32 v3, 5, v1            ; g
    v_lshlrev_b32 v4, 4, v1            ; l*16
    v_lshlrev_b32 v5, 3, v2            ; n*8
    s_and_b32 s39, s38, 3              ; qg
    s_lshr_b32 s40, s38, 2             ; kh
    s_mul_i32 s41, s36, 81920
    s_waitcnt lgkmcnt(0)
    """)
    srd(a, 16, 24, WS_SIZE)
    a(f"""
    s_lshl_b32 s42, s37, 3
    s_lshl_b32 s43, s39, 1
    s_add_u32 s42, s42, s43            ; TQ0
    s_mul_i32 s42, s42, 1280
    s_add_u32 s42, s42, s41
    s_add_u32 s42, s42, {WS_Q}
    buffer_load_dwordx4 {vr(QL[0],4)}, v4, s[16:19], s42 offen
    buffer_load_dwordx2 {vr(QL[0]+4,2)}, v5, s[16:19], s42 offen offset:1024
    buffer_load_dwordx4 {vr(QL[1],4)}, v4, s[16:19], s42 offen offset:1280
    buffer_load_dwordx2 {vr(QL[1]+4,2)}, v5, s[16:19], s42 offen offset:{1280+1024}
    """)
    a(f"""
    s_lshr_b32 s43, s38, 1             ; region
    s_and_b32 s44, s43, 1
    s_mul_i32 s44, s44, 40960
    s_and_b32 s45, s38, 1
    s_mul_i32 s45, s45, 5120
    s_add_u32 s44, s44, s45
    s_lshr_b32 s43, s43, 1             ; isV
    s_mul_i32 s45, s43, 81920
    s_add_u32 s45, s45, s44
    s_cmp_eq_u32 s43, 1
    s_mov_b32 s46, {WS_K}
    s_cselect_b32 s46, {WS_V}, s46
    s_add_u32 s46, s46, s41
    s_add_u32 s46, s46, s44
    """)
    for c in range(4):
        a(f"""
        s_add_u32 m0, s45, {c*10240}
        s_add_u32 s47, s46, {c*10240}
        buffer_load_dwordx4 v4, s[16:19], s47 offen lds
        buffer_load_dwordx4 v4, s[16:19], s47 offen offset:1024 lds
        buffer_load_dwordx4 v4, s[16:19], s47 offen offset:2048 lds
        buffer_load_dwordx4 v4, s[16:19], s47 offen offset:3072 lds
        s_add_u32 m0, s45, {c*10240+4096}
        s_add_u32 s47, s46, {c*10240+4096}
        buffer_load_dwordx4 v4, s[16:19], s47 offen lds
        """)
    a(f"""
    s_mul_i32 s43, s40, 40960
    v_add_u32 v{vKA}, s43, v4                 ; K lo
    v_add_u32 v{vKH}, s43, v5
    v_add_u32 v{vKH}, 1024, v{vKH}            ; K hi
    v_mul_u32_u24 v6, 320, v3
    v_lshl_add_u32 v6, v2, 4, v6
    s_add_u32 s43, s43, 81920
    v_add_u32 v{vVA}, s43, v6                 ; V
    v_mov_b32 v14, v{vKA}
    v_mov_b32 v15, v{vKH}
    v_mov_b32 v11, v{vVA}
    v_cmp_gt_u32 vcc, 20, v2
    s_mov_b64 s[48:49], vcc
    ; g==0 mask
    v_cmp_eq_u32 vcc, 0, v3
    s_mov_b64 s[50:51], vcc
    """)
    for b in range(2):
        a(f"""
        v_mov_b32 v{KL[b]+6}, 0x3f803f80
        v_mov_b32 v{KL[b]+7}, 0x00003f80
        """)
        for i in range(8):
            a(f"v_mov_b32 v{VF[b]+i}, 0x3f803f80")
    a("""
    s_mov_b32 s52, 0
    s_waitcnt vmcnt(15)
    s_barrier
    """)
    a(f"""
    s_mov_b64 exec, s[50:51]
    s_not_b64 exec, exec
    v_mov_b32 v{QL[0]+4}, 0
    v_mov_b32 v{QL[0]+5}, 0
    v_mov_b32 v{QL[1]+4}, 0
    v_mov_b32 v{QL[1]+5}, 0
    s_mov_b64 exec, -1
    v_mov_b32 v{QL[0]+6}, 0
    v_mov_b32 v{QL[0]+7}, 0
    v_mov_b32 v{QL[1]+6}, 0
    v_mov_b32 v{QL[1]+7}, 0
    """)
    def kread(buf, off, ka=vKA, kh=vKH):
        a(f"ds_read_b128 {vr(KL[buf],4)}, v{ka} offset:{off}")
        a(f"ds_read_b64 {vr(KL[buf]+4,2)}, v{kh} offset:{off}")
    def vread(buf, off):
        a("s_mov_b64 exec, s[48:49]")
        a(f"ds_read_b128 {vr(VF[buf],4)}, v{vVA} offset:{off}")
        a(f"ds_read_b128 {vr(VF[buf]+4,4)}, v{vVA} offset:{off+640}")
        a("s_mov_b64 exec, -1")
    def qk(u, buf):
        return [f"v_mfma_f32_32x32x16_bf16 {vr(S_[u],16)}, {vr(KL[buf],4)}, {vr(QL[u],4)}, 0",
                f"v_mfma_f32_32x32x16_bf16 {vr(S_[u],16)}, {vr(KL[buf]+4,4)}, {vr(QL[u]+4,4)}, {vr(S_[u],16)}"]
    def pv(u, buf, j):
        return f"v_mfma_f32_32x32x16_bf16 {vr(O_[u],16)}, {vr(VF[buf]+4*j,4)}, {vr(P_[u]+4*j,4)}, {vr(O_[u],16)}"
    def maxred(u, dst, first):
        s = S_[u]
        if first:
            a(f"v_max3_f32 v{dst}, v{s}, v{s+1}, v{s+2}")
            rest = list(range(3, 16))
        else:
            rest = list(range(0, 16))
        while len(rest) >= 2:
            a(f"v_max3_f32 v{dst}, v{dst}, v{s+rest[0]}, v{s+rest[1]}")
            rest = rest[2:]
        if rest:
            a(f"v_max_f32 v{dst}, v{dst}, v{s+rest[0]}")

    kread(0, 0)
    a("s_waitcnt lgkmcnt(0)")
    for u in range(2):
        for m in qk(u, 0):
            a(m)
    a.nop(16)
    for u in range(2):
        maxred(u, 144 + u, True)
    a.label("K2_SETM")
    for u in range(2):
        m = 144 + u
        a(f"""
        v_mov_b32 v146, v{m}
        s_nop 1
        v_permlane32_swap_b32 v{m}, v146
        s_nop 1
        v_max_f32 v{m}, v{m}, v146
        v_cvt_pk_bf16_f32 v147, v{m}, v{m}
        v_lshlrev_b32 v147, 16, v147             ; hi
        v_sub_f32 v148, v{m}, v147
        v_cvt_pk_bf16_f32 v149, v148, v148
        v_lshlrev_b32 v149, 16, v149             ; mid
        v_sub_f32 v148, v148, v149
        v_cvt_pk_bf16_f32 v150, v148, v148
        v_lshlrev_b32 v150, 16, v150             ; lo
        v_add_f32 v{MEFF[u]}, v147, v149
        v_add_f32 v{MEFF[u]}, v{MEFF[u]}, v150
        v_cvt_pk_bf16_f32 v147, -v147, -v149
        v_mov_b32 v151, 0
        v_cvt_pk_bf16_f32 v150, -v150, v151
        s_mov_b64 exec, s[50:51]
        v_mov_b32 v{QL[u]+6}, v147
        v_mov_b32 v{QL[u]+7}, v150
        s_mov_b64 exec, -1
        """)
    for u in range(2):
        for r in range(16):
            a(f"v_mov_b32 v{O_[u]+r}, 0")
    a(f"""
    v_mov_b32 v{vKA}, v14
    v_mov_b32 v{vKH}, v15
    v_mov_b32 v{vVA}, v11
    s_mov_b32 s53, 0
    """)
    kread(0, 0)
    vread(0, 0)
    a("s_waitcnt lgkmcnt(0)")
    for m in qk(0, 0):
        a(m)

    def ephase(u, mf_start, mf_mid, mf_end):
        s, p = S_[u], P_[u]
        seq = []
        for i in range(8):
            seq.append(f"v_exp_f32 v{s+2*i}, v{s+2*i}")
            seq.append(f"v_exp_f32 v{s+2*i+1}, v{s+2*i+1}")
            if i >= 1:
                seq.append(f"v_cvt_pk_bf16_f32 v{p+i-1}, v{s+2*i-2}, v{s+2*i-1}")
        seq.append("s_nop 0")
        seq.append(f"v_cvt_pk_bf16_f32 v{p+7}, v{s+14}, v{s+15}")
        out = []
        out.append(mf_start[0])
        for k, ins in enumerate(seq):
            out.append(ins)
            if k == 4:
                out.append(mf_start[1])
            if ins.startswith(f"v_cvt_pk_bf16_f32 v{p+3},"):
                midpos = len(out) + 2
        out.insert(midpos, mf_mid)
        out.append("s_nop 1")
        out.append(mf_end)
        for o in out:
            a(o)

    a.label("K2_CHUNK")
    for t in range(8):
        buf = t & 1
        nb = buf ^ 1
        if t == 7:
            a(f"""
            s_cmp_lg_u32 s52, 0
            s_cbranch_scc1 K2_NOBAR
            s_cmp_eq_u32 s53, 0
            s_cbranch_scc0 K2_W1
            s_waitcnt vmcnt(10)
            s_branch K2_WB
            """)
            a.label("K2_W1")
            a(f"""
            s_cmp_eq_u32 s53, 1
            s_cbranch_scc0 K2_W2
            s_waitcnt vmcnt(5)
            s_branch K2_WB
            """)
            a.label("K2_W2")
            a("s_waitcnt vmcnt(0)")
            a.label("K2_WB")
            a("s_barrier")
            a.label("K2_NOBAR")
        kread(nb, (t + 1) * 1280)
        a("s_waitcnt lgkmcnt(2)")
        ephase(0, qk(1, buf), pv(0, buf, 0), pv(0, buf, 1))
        a("s_waitcnt lgkmcnt(0)")
        vread(nb, (t + 1) * 1280)
        ephase(1, qk(0, nb), pv(1, buf, 0), pv(1, buf, 1))
    a(f"""
    v_add_u32 v{vKA}, 10240, v{vKA}
    v_add_u32 v{vKH}, 10240, v{vKH}
    v_add_u32 v{vVA}, 10240, v{vVA}
    s_add_u32 s53, s53, 1
    s_cmp_lt_u32 s53, 4
    s_cbranch_scc1 K2_CHUNK
    s_waitcnt lgkmcnt(0)
    """)
    a.nop(16)
    a(f"""
    s_cmp_lg_u32 s52, 0
    s_cbranch_scc1 K2_COMBINE
    s_mov_b32 s54, {f32bits(2.0**-30)}
    s_mov_b32 s55, {f32bits(2.0**30)}
    v_cmp_le_f32 s[56:57], s54, v{O_[0]+12}
    v_cmp_ge_f32 s[58:59], s55, v{O_[0]+12}
    s_and_b64 s[56:57], s[56:57], s[58:59]
    v_cmp_le_f32 s[58:59], s54, v{O_[1]+12}
    s_and_b64 s[56:57], s[56:57], s[58:59]
    v_cmp_ge_f32 s[58:59], s55, v{O_[1]+12}
    s_and_b64 s[56:57], s[56:57], s[58:59]
    s_cmp_eq_u64 s[56:57], -1
    s_cbranch_scc1 K2_COMBINE
    """)
    a(f"""
    s_mov_b32 s52, 1
    v_mov_b32 v{QL[0]+6}, 0
    v_mov_b32 v{QL[0]+7}, 0
    v_mov_b32 v{QL[1]+6}, 0
    v_mov_b32 v{QL[1]+7}, 0
    v_mov_b32 v{vKA}, v14
    v_mov_b32 v{vKH}, v15
    v_mov_b32 v144, 0xff800000
    v_mov_b32 v145, 0xff800000
    s_mov_b32 s53, 0
    """)
    a.label("K2_MAXLOOP")
    kread(0, 0)
    a("s_waitcnt lgkmcnt(0)")
    for u in range(2):
        for m in qk(u, 0):
            a(m)
    a.nop(16)
    for u in range(2):
        maxred(u, 144 + u, False)
    a(f"""
    v_add_u32 v{vKA}, 1280, v{vKA}
    v_add_u32 v{vKH}, 1280, v{vKH}
    s_add_u32 s53, s53, 1
    s_cmp_lt_u32 s53, 32
    s_cbranch_scc1 K2_MAXLOOP
    s_branch K2_SETM
    """)
    a.label("K2_COMBINE")
    a(f"""
    s_barrier
    s_lshl_b32 s43, s39, 13            ; qg*8192
    v_add_u32 v6, s43, v4              ; + l*16
    s_cmp_eq_u32 s40, 0
    s_cbranch_scc1 K2_RECV
    """)
    for u in range(2):
        a(f"v_mov_b32 v{O_[u]+13}, v{MEFF[u]}")
        for q in range(4):
            a(f"ds_write_b128 v6, {vr(O_[u]+4*q,4)} offset:{u*4096+q*1024}")
    a("""
    s_waitcnt lgkmcnt(0)
    s_barrier
    s_branch K2_END
    """)
    a.label("K2_RECV")
    a("s_barrier")
    for u in range(2):
        for q in range(4):
            a(f"ds_read_b128 {vr(S_[u]+4*q,4)}, v6 offset:{u*4096+q*1024}")
    a(f"""
    s_lshl_b32 s42, s37, 3
    s_lshl_b32 s43, s39, 1
    s_add_u32 s42, s42, s43
    s_mul_i32 s42, s42, {32*1280}
    s_mul_i32 s43, s36, 40
    s_add_u32 s42, s42, s43
    s_add_u32 s42, s42, {WS_O}
    s_add_u32 s43, s42, {32*1280}
    v_mul_u32_u24 v7, 1280, v2
    v_lshl_add_u32 v7, v3, 3, v7
    s_waitcnt lgkmcnt(0)
    """)
    for u in range(2):
        o, s = O_[u], S_[u]
        a(f"""
        v_max_f32 v144, v{MEFF[u]}, v{s+13}
        v_sub_f32 v145, v{MEFF[u]}, v144
        v_sub_f32 v146, v{s+13}, v144
        v_exp_f32 v145, v145
        v_exp_f32 v146, v146
        s_nop 0
        v_mul_f32 v147, v{o+12}, v145
        v_fma_f32 v147, v{s+12}, v146, v147
        v_rcp_f32 v147, v147
        s_nop 0
        v_mul_f32 v145, v145, v147
        v_mul_f32 v146, v146, v147
        """)
        for r in range(12):
            a(f"v_mul_f32 v{o+r}, v{o+r}, v145")
            a(f"v_fma_f32 v{o+r}, v{s+r}, v146, v{o+r}")
        for i in range(6):
            a(f"v_cvt_pk_bf16_f32 v{148+i}, v{o+2*i}, v{o+2*i+1}")
        so = "s42" if u == 0 else "s43"
        a(f"""
        buffer_store_dwordx2 v[148:149], v7, s[16:19], {so} offen
        buffer_store_dwordx2 v[150:151], v7, s[16:19], {so} offen offset:16
        s_mov_b64 exec, s[50:51]
        buffer_store_dwordx2 v[152:153], v7, s[16:19], {so} offen offset:32
        s_mov_b64 exec, -1
        s_nop 1
        """)
    a.label("K2_END")
    a("s_endpgm")
    return a.text(), kd("k2_kernel", 160)
```

```python
from common import *

LDS_SK = 80 * 1024

def gen_sk(kind):
    name = f"{kind}_kernel"
    L = kind.upper()
    KS = 108 if kind == "mlp2" else 40
    KW = KS // 4
    WT = WS_W2T if kind == "mlp2" else WS_WOT
    a = Asm()
    a(khead(name))
    a(f"""
    s_cmp_ge_u32 s2, 256
    s_cbranch_scc1 {L}_END
    s_load_dwordx2 s[24:25], s[0:1], {KA_WS}
    s_load_dwordx2 s[4:5], s[0:1], {KA_B2 if kind == 'mlp2' else KA_X}
    s_load_dwordx2 s[6:7], s[0:1], {KA_OUT}
    v_and_b32 v1, 63, v0
    v_lshrrev_b32 v2, 6, v0
    s_and_b32 s3, s2, 7
    s_lshr_b32 s36, s2, 3
    v_readfirstlane_b32 s38, v2        ; w
    s_lshl_b32 s3, s3, 3
    s_lshr_b32 s37, s36, 2
    s_add_u32 s37, s37, s3             ; tt
    s_and_b32 s36, s36, 3              ; nq
    v_and_b32 v2, 31, v1
    v_lshrrev_b32 v3, 5, v1
    v_lshlrev_b32 v4, 4, v1            ; l*16
    s_waitcnt lgkmcnt(0)
    """)
    srd(a, 16, 24, WS_SIZE)
    if kind == "mlp2":
        srd(a, 8, 4, D * 2)
    else:
        srd(a, 8, 4, S * D * 2)
        srd(a, 12, 6, S * D * 2)
    a(f"""
    s_mul_i32 s39, s38, {KW}           ; ks0
    s_mul_i32 s46, s36, {5*KS}
    s_add_u32 s46, s46, s39
    s_lshl_b32 s46, s46, 10
    s_add_u32 s40, s46, {WT}
    """)
    for n in range(1, 5):
        a(f"s_add_u32 s{40+n}, s{39+n}, {KS*1024}")
    if kind == "mlp2":
        a(f"""
        s_mul_i32 s45, s37, {KS}
        s_add_u32 s45, s45, s39
        s_lshl_b32 s45, s45, 10
        s_add_u32 s45, s45, {WS_H}
        v_mov_b32 v5, v4
        """)
        astep = 1024
    else:
        a(f"""
        s_mul_i32 s45, s37, {32*1280}
        s_lshl_b32 s46, s39, 5
        s_add_u32 s45, s45, s46
        s_add_u32 s45, s45, {WS_O}
        v_mul_u32_u24 v5, 1280, v2
        v_lshl_add_u32 v5, v3, 4, v5
        """)
        astep = 32
    ACC = lambda n: 16 + 16 * n
    DEPTH = 4
    FR = lambda slot, i: 96 + slot * 24 + i * 4
    for r in range(16, 96):
        a(f"v_mov_b32 v{r}, 0")

    def loads(ks):
        slot = ks % DEPTH
        sub = ks % 4
        a(f"buffer_load_dwordx4 {vr(FR(slot,0),4)}, v5, s[16:19], s45 offen offset:{sub*astep}")
        for n in range(5):
            a(f"buffer_load_dwordx4 {vr(FR(slot,1+n),4)}, v4, s[16:19], s{40+n} offen offset:{sub*1024}")
        if sub == 3:
            for n in range(5):
                a(f"s_add_u32 s{40+n}, s{40+n}, 4096")
            a(f"s_add_u32 s45, s45, {4*astep}")

    for ks in range(min(DEPTH, KW)):
        loads(ks)
    for ks in range(KW):
        inflight = min(KW, ks + DEPTH) - ks
        a(f"s_waitcnt vmcnt({(inflight-1)*6})")
        slot = ks % DEPTH
        for n in range(5):
            a(f"v_mfma_f32_32x32x16_bf16 {vr(ACC(n),16)}, {vr(FR(slot,1+n),4)}, {vr(FR(slot,0),4)}, {vr(ACC(n),16)}")
        if ks + DEPTH < KW:
            loads(ks + DEPTH)
    a.nop(16)
    a(f"""
    s_mul_i32 s46, s38, {20*1024}
    v_add_u32 v6, s46, v4
    """)
    for q in range(20):
        a(f"ds_write_b128 v6, {vr(16+4*q,4)} offset:{q*1024}")
    a(f"""
    s_mul_i32 s46, s36, 160
    s_mul_i32 s47, s38, 40
    s_add_u32 s46, s46, s47
    v_lshl_add_u32 v7, v3, 2, s46       ; feature0
    v_lshlrev_b32 v7, 1, v7             ; bytes
    s_lshl_b32 s47, s37, 5
    v_add_u32 v8, s47, v2               ; token
    v_mul_u32_u24 v8, 1280, v8
    v_add_u32 v8, v8, v7
    s_mov_b32 s48, {WS_G}
    """)
    if kind == "mlp2":
        for u in range(5):
            a(f"buffer_load_dwordx2 {vr(96+2*u,2)}, v7, s[8:11], 0 offen offset:{16*u}")
    else:
        for u in range(5):
            a(f"buffer_load_dwordx2 {vr(96+2*u,2)}, v8, s[8:11], 0 offen offset:{16*u}")
            a(f"buffer_load_dwordx2 {vr(106+2*u,2)}, v8, s[16:19], s48 offen offset:{16*u}")
    a(f"""
    s_waitcnt lgkmcnt(0)
    s_barrier
    s_mul_i32 s46, s38, {5*1024}
    v_add_u32 v6, s46, v4
    v_add_u32 v9, {40*1024}, v6
    """)
    for src in range(4):
        for u in range(5):
            a(f"ds_read_b128 {vr(16+(src*5+u)*4,4)}, v{6 if src < 2 else 9} offset:{(src%2)*20*1024+u*1024}")
    a("s_waitcnt lgkmcnt(0)")
    for u in range(5):
        for i in range(4):
            r = 16 + u * 4 + i
            a(f"v_add_f32 v{r}, v{r}, v{r+20}")
            a(f"v_add_f32 v{r+40}, v{r+40}, v{r+60}")
    for u in range(5):
        for i in range(4):
            r = 16 + u * 4 + i
            a(f"v_add_f32 v{r}, v{r}, v{r+40}")
    a("s_waitcnt vmcnt(0)")
    a(f"s_mov_b32 s49, {f32bits(-math.log2(math.e))}")
    for u in range(5):
        r = 16 + u * 4
        a(f"""
        v_cvt_pk_bf16_f32 v40, v{r}, v{r+1}
        v_cvt_pk_bf16_f32 v41, v{r+2}, v{r+3}
        v_lshlrev_b32 v{r}, 16, v40
        v_and_b32 v{r+1}, 0xffff0000, v40
        v_lshlrev_b32 v{r+2}, 16, v41
        v_and_b32 v{r+3}, 0xffff0000, v41
        v_lshlrev_b32 v44, 16, v{96+2*u}
        v_and_b32 v45, 0xffff0000, v{96+2*u}
        v_lshlrev_b32 v46, 16, v{97+2*u}
        v_and_b32 v47, 0xffff0000, v{97+2*u}
        """)
        if kind == "mlp2":
            for i in range(4):
                a(f"v_add_f32 v{r+i}, v{r+i}, v{44+i}")
            a(f"""
            v_cvt_pk_bf16_f32 v40, v{r}, v{r+1}
            v_cvt_pk_bf16_f32 v41, v{r+2}, v{r+3}
            v_lshlrev_b32 v{r}, 16, v40
            v_and_b32 v{r+1}, 0xffff0000, v40
            v_lshlrev_b32 v{r+2}, 16, v41
            v_and_b32 v{r+3}, 0xffff0000, v41
            """)
            for i in range(4):
                a(f"v_mul_f32 v{44+i}, s49, v{r+i}")
            for i in range(4):
                a(f"v_exp_f32 v{44+i}, v{44+i}")
            a("s_nop 0")
            for i in range(4):
                a(f"v_add_f32 v{44+i}, 1.0, v{44+i}")
            for i in range(4):
                a(f"v_rcp_f32 v{44+i}, v{44+i}")
            a("s_nop 0")
            for i in range(4):
                a(f"v_mul_f32 v{44+i}, v{44+i}, v{r+i}")
            a(f"""
            v_cvt_pk_bf16_f32 v40, v44, v45
            v_cvt_pk_bf16_f32 v41, v46, v47
            buffer_store_dwordx2 v[40:41], v8, s[16:19], s48 offen offset:{16*u}
            s_nop 1
            """)
        else:
            a(f"""
            v_lshlrev_b32 v48, 16, v{106+2*u}
            v_and_b32 v49, 0xffff0000, v{106+2*u}
            v_lshlrev_b32 v50, 16, v{107+2*u}
            v_and_b32 v51, 0xffff0000, v{107+2*u}
            """)
            for i in range(4):
                a(f"v_mul_f32 v{r+i}, v{r+i}, v{48+i}")
            a(f"""
            v_cvt_pk_bf16_f32 v40, v{r}, v{r+1}
            v_cvt_pk_bf16_f32 v41, v{r+2}, v{r+3}
            v_lshlrev_b32 v{r}, 16, v40
            v_and_b32 v{r+1}, 0xffff0000, v40
            v_lshlrev_b32 v{r+2}, 16, v41
            v_and_b32 v{r+3}, 0xffff0000, v41
            """)
            for i in range(4):
                a(f"v_add_f32 v{r+i}, v{r+i}, v{44+i}")
            a(f"""
            v_cvt_pk_bf16_f32 v40, v{r}, v{r+1}
            v_cvt_pk_bf16_f32 v41, v{r+2}, v{r+3}
            buffer_store_dwordx2 v[40:41], v8, s[12:15], 0 offen offset:{16*u}
            s_nop 1
            """)
    a.label(f"{L}_END")
    a("s_endpgm")
    return a.text(), kd(name, 192)
```

```python
import sys
from common import *
from k1 import gen_k1, LDS_K1
from k2 import gen_k2, LDS_K2
from sk import gen_sk, LDS_SK

NAME = "recurrent_scan__softmax_full_mha__mixer_channel_mlp__prompt"
ref = open(f"cdna_kernels/{NAME}.s.ref").read().split("\n")
hdr = [l for l in ref if l.startswith(";") and "@launch" not in l and "Override launch" not in l and "grid=ceil" not in l]
launches = [
    ("k1_kernel", 256, 512, LDS_K1),
    ("k2_kernel", 256, 512, LDS_K2),
    ("mlp2_kernel", 256, 256, LDS_SK),
    ("wo_kernel", 256, 256, LDS_SK),
]
out = "\n".join(hdr) + "\n"
for k, g, b, l in launches:
    out += f"; @launch kernel={k} grid=({g},1,1) block=({b},1,1) lds={l}\n"
out += '.amdgcn_target "amdgcn-amd-amdhsa--gfx950"\n.text\n'
parts = [gen_k1(), gen_k2(), gen_sk("mlp2"), gen_sk("wo")]
for t, _ in parts:
    out += t
out += '.section .rodata,"a"\n'
for _, k in parts:
    out += k
dst = sys.argv[1] if len(sys.argv) > 1 else f"cdna_kernels/{NAME}.s"
open(dst, "w").write(out)
print("wrote", dst, len(out))
```

```python
import math

S = 2048; D = 640; H = 32; DH = 20; F = 1728

WS_Q   = 0
WS_K   = 4 << 20
WS_V   = 8 << 20
WS_H   = 12 << 20
WS_W2T = 20 << 20
WS_WOT = 24 << 20
WS_O   = 28 << 20
WS_G   = 32 << 20
WS_P   = 48 << 20
WS_SIZE = 72 << 20

KA_X, KA_WQKV, KA_WO, KA_BX, KA_W1, KA_B1, KA_W2, KA_B2, KA_OUT, KA_DBG, KA_WS = [8 * i for i in range(11)]

def f32bits(x):
    import struct
    return struct.unpack("<I", struct.pack("<f", x))[0]

class Asm:
    def __init__(self):
        self.lines = []
    def __call__(self, s):
        for l in s.strip("\n").split("\n"):
            l = l.strip()
            if not l:
                continue
            if l.endswith(":") or l.startswith("."):
                self.lines.append(l)
            else:
                self.lines.append("    " + l)
    def label(self, name):
        self.lines.append(name + ":")
    def nop(self, n):
        while n > 0:
            k = min(n, 16)
            self.lines.append(f"    s_nop {k-1}")
            n -= k
    def text(self):
        return "\n".join(self.lines) + "\n"

def vr(a, n=1):
    return f"v{a}" if n == 1 else f"v[{a}:{a+n-1}]"
def sr(a, n=1):
    return f"s{a}" if n == 1 else f"s[{a}:{a+n-1}]"

def srd(a, d, lo, size):
    a(f"""
    s_mov_b32 s{d}, s{lo}
    s_mov_b32 s{d+1}, s{lo+1}
    s_mov_b32 s{d+2}, {size}
    s_mov_b32 s{d+3}, 0x00020000
    """)

def kd(name, vgpr, sgpr=102):
    acc = (vgpr + 3) // 4 * 4
    return f""".p2align 6
.amdhsa_kernel {name}
  .amdhsa_next_free_vgpr {vgpr}
  .amdhsa_next_free_sgpr {sgpr}
  .amdhsa_accum_offset {acc}
  .amdhsa_group_segment_fixed_size 0
  .amdhsa_kernarg_size 88
  .amdhsa_user_sgpr_count 2
  .amdhsa_user_sgpr_kernarg_segment_ptr 1
  .amdhsa_system_sgpr_workgroup_id_x 1
  .amdhsa_float_denorm_mode_32 3
.end_amdhsa_kernel
"""

def khead(name):
    return f""".globl {name}
.p2align 8
.type {name},@function
{name}:
"""

import os
STAMPS = os.environ.get("STAMPS", "0") == "1"
WS_DBG = 40 << 20
def stamp(a, idx):
    if not STAMPS:
        return
    a(f"""
    s_memtime s[98:99]
    s_waitcnt lgkmcnt(0)
    s_mov_b32 s{70+idx}, s98
    """)
def stamp_rt(a, idx):
    if not STAMPS:
        return
    a(f"""
    s_memrealtime s[98:99]
    s_waitcnt lgkmcnt(0)
    s_mov_b32 s{70+idx}, s98
    """)
def stamp_flush(a, n, kidx, wave_sgpr, vtmp=(250, 251)):
    if not STAMPS:
        return
    a(f"""
    s_lshl_b32 s96, s2, 4
    s_add_u32 s96, s96, s{wave_sgpr}
    s_lshl_b32 s96, s96, 6
    s_add_u32 s96, s96, {WS_DBG + kidx * (1 << 20)}
    v_mov_b32 v{vtmp[0]}, 0
    """)
    for i in range(n):
        a(f"""
        v_mov_b32 v{vtmp[1]}, s{70+i}
        buffer_store_dword v{vtmp[1]}, v{vtmp[0]}, s[16:19], s96 offen offset:{4*i}
        """)
```

```python
from common import *

XBASE = 128 * 1024
LDS_K1 = 160 * 1024
NIT = 10
EXP = os.environ.get("K1EXP", "")

XF = lambda b, tt: 24 + b * 16 + tt * 4
WF = lambda b, ft: 24 + b * 16 + 8 + ft * 4
ACC = lambda ft, tt: 56 + (ft * 2 + tt) * 16
XR = lambda it, hf: 120 + (it * 2 + hf) * 4
TR0 = 200
TT = 216
AL, BE = 250, 252

def trans_issue(a, tag):
    a(f"""
    s_lshl_b32 s55, s2, 3
    s_add_u32 s55, s55, s38         ; gw
    v_and_b32 v2, 31, v1
    v_lshrrev_b32 v3, 5, v1
    """)
    for f in range(2):
        a(f"""
        s_add_u32 s56, s55, {2048*f}
        s_mov_b32 s{62+f}, 0
        s_cmp_ge_u32 s56, 2960
        s_cbranch_scc1 K1_TI{tag}{f}
        s_cmp_lt_u32 s56, 2160
        s_cselect_b32 s8, s32, s34
        s_cselect_b32 s9, s33, s35
        s_mov_b32 s10, {D*D*2}
        s_cselect_b32 s10, {F*D*2}, s10
        s_mov_b32 s11, 0x00020000
        s_cselect_b32 s57, 0, 2160
        s_mov_b32 s58, {(1<<32)//40+1}
        s_cselect_b32 s58, {(1<<32)//108+1}, s58
        s_cselect_b32 s59, 108, 40
        s_mov_b32 s64, {WS_WOT}
        s_cselect_b32 s64, {WS_W2T}, s64
        s_cselect_b32 s67, 16, 20
        s_sub_u32 s56, s56, s57              ; id'
        s_lshl_b32 s57, s56, 10
        s_add_u32 s{62+f}, s64, s57          ; dst
        s_mul_hi_u32 s57, s56, s58           ; nt
        s_mul_i32 s58, s57, s59
        s_sub_u32 s58, s56, s58              ; ks
        s_mul_i32 s64, s58, s67
        s_mov_b32 s65, {4*1280}              ; g stride
        s_mov_b32 s66, {4*1280}
        s_cmp_eq_u32 s67, 20
        s_cselect_b32 s59, s58, 0
        s_cmp_ge_u32 s59, 32
        s_cbranch_scc0 K1_TM{tag}{f}
        s_sub_u32 s64, s58, 32
        s_mul_i32 s64, s64, 80
        s_add_u32 s64, s64, 16
        s_mov_b32 s65, {40*1280}
        s_mov_b32 s66, {16*1280}
        K1_TM{tag}{f}:
        s_mul_i32 s58, s64, 1280
        s_lshl_b32 s57, s57, 6
        s_add_u32 s58, s58, s57
        v_mul_lo_u32 v4, v3, s65
        v_lshl_add_u32 v4, v2, 1, v4
        """)
        for j in range(8):
            if j == 4:
                a("s_add_u32 s58, s58, s66")
            a(f"s_add_u32 s57, s58, {j*1280}")
            a(f"buffer_load_ushort v{TR0+8*f+j}, v4, s[8:11], s57 offen")
        a.label(f"K1_TI{tag}{f}")

def trans_store(a, tag):
    a("""
    s_waitcnt vmcnt(0)
    v_lshlrev_b32 v6, 4, v1
    """)
    for f in range(2):
        lab = f"K1_TS{f}_{tag}"
        b = TR0 + 8 * f
        a(f"""
        s_cmp_eq_u32 s{62+f}, 0
        s_cbranch_scc1 {lab}
        v_lshl_or_b32 v{b}, v{b+1}, 16, v{b}
        v_lshl_or_b32 v{b+1}, v{b+3}, 16, v{b+2}
        v_lshl_or_b32 v{b+2}, v{b+5}, 16, v{b+4}
        v_lshl_or_b32 v{b+3}, v{b+7}, 16, v{b+6}
        buffer_store_dwordx4 {vr(b,4)}, v6, s[16:19], s{62+f} offen
        """)
        a.label(lab)
    a("s_nop 1")

def gen_k1():
    a = Asm()
    a(khead("k1_kernel"))
    a(f"""
    s_cmp_ge_u32 s2, 256
    s_cbranch_scc1 K1_END
    s_load_dwordx2 s[4:5], s[0:1], {KA_X}
    s_load_dwordx2 s[28:29], s[0:1], {KA_WQKV}
    s_load_dwordx2 s[30:31], s[0:1], {KA_W1}
    s_load_dwordx2 s[26:27], s[0:1], {KA_B1}
    s_load_dwordx2 s[24:25], s[0:1], {KA_WS}
    s_load_dwordx2 s[32:33], s[0:1], {KA_W2}
    s_load_dwordx2 s[34:35], s[0:1], {KA_WO}
    v_and_b32 v1, 63, v0
    v_lshrrev_b32 v2, 6, v0
    s_and_b32 s3, s2, 7
    s_lshr_b32 s52, s2, 3           ; i
    v_readfirstlane_b32 s38, v2
    s_and_b32 s36, s3, 1
    s_lshl_b32 s36, s36, 3
    s_and_b32 s60, s52, 7           ; mt_local
    s_add_u32 s36, s36, s60         ; mt
    s_lshr_b32 s37, s3, 1
    s_lshl_b32 s37, s37, 2
    s_lshr_b32 s61, s52, 3          ; nt_local
    s_add_u32 s37, s37, s61         ; nt
    s_and_b32 s39, s38, 1           ; tg
    s_lshr_b32 s40, s38, 1          ; fg
    s_cmp_ge_u32 s37, 8
    s_cselect_b32 s42, 1, 0         ; is_h
    s_mov_b32 s43, {3*D*2}
    s_cselect_b32 s43, {F*2}, s43
    s_cselect_b32 s44, 8, 0
    s_sub_u32 s44, s37, s44
    s_lshl_b32 s44, s44, 8
    s_lshl_b32 s46, s38, 12         ; M0 base W
    s_lshl_b32 s49, s43, 6
    s_lshl_b32 s50, s40, 6
    s_add_u32 s50, s50, s44
    s_mov_b32 s51, 0
    s_cmp_ge_u32 s50, 640
    s_cselect_b32 s51, 1, s51
    s_cmp_ge_u32 s50, 1280
    s_cselect_b32 s51, 2, s51
    s_cmp_eq_u32 s42, 1
    s_cselect_b32 s51, 3, s51       ; kind 0=Q 1=K 2=V 3=H
    s_mul_i32 s53, s51, 640
    s_cselect_b32 s53, 0, s53
    s_mov_b32 s54, {3*D}
    s_cselect_b32 s54, {F}, s54
    s_sub_u32 s53, s50, s53
    s_cmp_lt_u32 s50, s54
    s_cselect_b32 s54, 1, 0
    """)
    a(f"""
    s_lshl_b32 s55, s36, 7
    s_lshl_b32 s56, s38, 4
    s_add_u32 s55, s55, s56
    v_lshrrev_b32 v2, 3, v1
    v_add_u32 v3, s55, v2
    v_mul_u32_u24 v3, 1280, v3
    v_and_b32 v4, 7, v1
    v_lshl_add_u32 v8, v4, 4, v3
    v_add_u32 v9, {8*1280}, v8          ; rows +8
    v_add_u32 v3, s56, v2
    v_lshrrev_b32 v5, 1, v3
    v_and_b32 v5, 7, v5
    v_xor_b32 v5, v5, v4
    v_lshlrev_b32 v3, 7, v3
    v_lshl_add_u32 v3, v5, 4, v3
    v_add_u32 v22, {XBASE}, v3          ; rows+0
    v_xor_b32 v5, 4, v5
    v_lshrrev_b32 v3, 7, v3
    v_add_u32 v3, 8, v3
    v_lshlrev_b32 v3, 7, v3
    v_lshl_add_u32 v3, v5, 4, v3
    v_add_u32 v23, {XBASE}, v3          ; rows+8
    """)
    for jj in range(4):
        a(f"""
        s_lshl_b32 s55, s38, 3
        s_add_u32 s55, s55, {2*jj}
        v_lshrrev_b32 v2, 5, v1
        v_add_u32 v2, s55, v2           ; k
        v_and_b32 v3, 3, v2
        v_and_b32 v4, 31, v1
        v_lshrrev_b32 v5, 2, v4
        v_xor_b32 v5, v5, v3            ; blk
        v_and_b32 v4, 3, v4
        v_lshl_add_u32 v4, v5, 2, v4    ; csrc
        v_mul_lo_u32 v2, v2, s43
        v_lshl_add_u32 v2, v4, 4, v2
        s_lshl_b32 s55, s44, 1
        v_add_u32 v{10+jj}, s55, v2
        """)
    a("""
    s_mov_b32 s48, 0
    s_waitcnt lgkmcnt(0)
    """)
    srd(a, 16, 24, WS_SIZE)
    stamp(a, 0); stamp_rt(a, 1)

    def dma_list(stage):
        if "nodma" in EXP:
            return []
        out = []
        for jj in range(4):
            out.append(f"""
            s_add_u32 m0, s46, {stage*32768 + jj*1024}
            s_nop 0
            buffer_load_dwordx4 v{10+jj}, s[12:15], s48 offen lds
            """)
        out[-1] += """
        s_add_u32 s48, s48, s49
        """
        return out
    def dma(stage):
        for d in dma_list(stage):
            a(d)

    a("""
    s_cmp_eq_u32 s37, 15
    s_cbranch_scc1 K1_TRANS
    """)
    srd(a, 84, 4, S * D * 2)
    srd(a, 20, 26, F * 2)
    a(f"""
    s_cmp_eq_u32 s42, 1
    s_cselect_b32 s12, s30, s28
    s_cselect_b32 s13, s31, s29
    s_mov_b32 s14, {D*3*D*2}
    s_cselect_b32 s14, {D*F*2}, s14
    s_mov_b32 s15, 0x00020000
    """)
    for it in range(NIT):
        for hf in range(2):
            a(f"buffer_load_dwordx4 {vr(XR(it,hf),4)}, v{8+hf}, s[84:87], 0 offen offset:{it*128}")
    dma(0); dma(1); dma(2)
    trans_issue(a, "A")
    a(f"""
    v_and_b32 v2, 31, v1
    v_lshrrev_b32 v3, 5, v1
    s_lshl_b32 s55, s39, 6
    v_add_u32 v2, s55, v2           ; tok
    v_lshrrev_b32 v4, 1, v2
    v_and_b32 v4, 7, v4
    v_xor_b32 v4, v4, v3            ; g ^ sw
    v_lshlrev_b32 v2, 7, v2
    v_lshl_add_u32 v2, v4, 4, v2
    v_add_u32 v14, {XBASE}, v2
    v_xor_b32 v15, 32, v14
    v_xor_b32 v16, 64, v14
    v_xor_b32 v17, 96, v14
    v_and_b32 v2, 15, v1
    v_lshrrev_b32 v3, 2, v2         ; r
    v_and_b32 v4, 3, v2             ; c4
    v_lshrrev_b32 v5, 4, v1         ; G
    v_and_b32 v6, 1, v5             ; half
    v_lshrrev_b32 v5, 1, v5         ; kgrp
    v_lshl_add_u32 v5, v5, 3, v3    ; 8kgrp + r
    v_lshlrev_b32 v5, 9, v5
    v_lshl_add_u32 v5, v6, 5, v5
    v_lshl_add_u32 v5, v4, 3, v5
    """)
    for ft in range(2):
        a(f"""
        s_lshl_b32 s55, s40, 1
        s_add_u32 s55, s55, {ft}
        v_xor_b32 v6, s55, v3
        v_lshl_add_u32 v{18+ft}, v6, 6, v5
        v_add_u32 v{20+ft}, 0x10000, v{18+ft}
        """)
    for r in range(TT, TT + 8):
        a(f"v_mov_b32 v{r}, 0")
    a(f"v_mov_b32 v{TT+8}, 0x3f803f80")
    for it in range(NIT):
        rem = (NIT - 1 - it) * 2 + 12 + 8
        a(f"s_waitcnt vmcnt({min(rem, 63)})")
        for hf in range(2):
            for i in range(4):
                x = XR(it, hf) + i
                a(f"v_dot2_f32_bf16 v{TT+hf*2+(i&1)}, v{x}, v{TT+8}, v{TT+hf*2+(i&1)}")
                a(f"v_dot2_f32_bf16 v{TT+4+hf*2+(i&1)}, v{x}, v{x}, v{TT+4+hf*2+(i&1)}")
    a.nop(3)
    for q in range(4):
        a(f"v_add_f32 v{TT+2*q}, v{TT+2*q}, v{TT+2*q+1}")
    a.nop(2)
    for q in range(4):
        a(f"v_add_f32_dpp v{TT+2*q+1}, v{TT+2*q}, v{TT+2*q} quad_perm:[1,0,3,2] row_mask:0xf bank_mask:0xf")
    a.nop(1)
    for q in range(4):
        a(f"v_add_f32_dpp v{TT+2*q}, v{TT+2*q+1}, v{TT+2*q+1} quad_perm:[2,3,0,1] row_mask:0xf bank_mask:0xf")
    a.nop(1)
    for q in range(4):
        a(f"v_add_f32_dpp v{TT+2*q+1}, v{TT+2*q}, v{TT+2*q} row_half_mirror row_mask:0xf bank_mask:0xf")
    a(f"""
    s_mov_b32 s56, {f32bits(1.0/640)}
    s_mov_b32 s57, {f32bits(1e-5)}
    v_mov_b32 v{TT+10}, v{TT+1}
    v_mov_b32 v{TT+11}, v{TT+5}
    v_mov_b32 v{TT+22}, v{TT+3}
    v_mov_b32 v{TT+23}, v{TT+7}
    """)
    def both(fmt):
        for hf in range(2):
            b = TT + 10 + hf * 12
            a(fmt.format(**{f"r{i}": f"v{b+i}" for i in range(12)}, al=f"v{AL+hf}", be=f"v{BE+hf}"))
    seq = """v_mul_f32 {r0}, s56, {r0}
    v_mul_f32 {r1}, s56, {r1}
    v_fma_f32 {r1}, -{r0}, {r0}, {r1}
    v_max_f32 {r1}, 0, {r1}
    v_cvt_pk_bf16_f32 {r2}, {r0}, {r0}
    v_cvt_pk_bf16_f32 {r3}, {r1}, {r1}
    v_lshlrev_b32 {r2}, 16, {r2}
    v_lshlrev_b32 {r3}, 16, {r3}
    v_add_f32 {r3}, s57, {r3}
    v_cvt_pk_bf16_f32 {r3}, {r3}, {r3}
    v_lshlrev_b32 {r3}, 16, {r3}
    v_sqrt_f32 {r3}, {r3}
    v_cvt_pk_bf16_f32 {r3}, {r3}, {r3}
    v_lshlrev_b32 {r3}, 16, {r3}
    v_rcp_f32 {r4}, {r3}
    v_sub_f32 {r6}, {r0}, {r2}
    v_fma_f32 {r5}, -{r3}, {r4}, 1.0
    v_fma_f32 {r4}, {r4}, {r5}, {r4}
    v_mul_f32 {r5}, {r2}, {r4}
    v_mul_f32 {r6}, {r6}, {r4}
    v_mul_f32 {r7}, {r1}, {r4}
    v_cvt_pk_bf16_f32 {r6}, {r6}, {r6}
    v_mul_f32 {r7}, {r7}, {r4}
    v_lshlrev_b32 {r6}, 16, {r6}
    v_cvt_pk_bf16_f32 {r7}, {r7}, {r7}
    v_lshlrev_b32 {r7}, 16, {r7}
    v_add_f32 {r7}, s57, {r7}
    v_cvt_pk_bf16_f32 {r7}, {r7}, {r7}
    v_lshlrev_b32 {r7}, 16, {r7}
    v_sqrt_f32 {r7}, {r7}
    v_cvt_pk_bf16_f32 {r7}, {r7}, {r7}
    v_lshlrev_b32 {r7}, 16, {r7}
    v_rcp_f32 {r8}, {r7}
    v_mov_b32 {al}, {r4}
    v_fma_f32 {r9}, -{r7}, {r8}, 1.0
    v_fma_f32 {r8}, {r8}, {r9}, {r8}
    v_sub_f32 {be}, 0, {r5}
    v_mul_f32 {r10}, {r4}, {r8}
    v_add_f32 {r11}, {r5}, {r6}
    v_mul_f32 {r11}, {r11}, {r8}
    v_sub_f32 {r11}, 0, {r11}"""
    for line in seq.split("\n"):
        both(line.strip())
    a(f"""
    s_cmp_eq_u32 s42, 1
    s_cbranch_scc0 K1_NOTH1
    v_mov_b32 v{AL}, v{TT+20}
    v_mov_b32 v{BE}, v{TT+21}
    v_mov_b32 v{AL+1}, v{TT+32}
    v_mov_b32 v{BE+1}, v{TT+33}
    """)
    a.label("K1_NOTH1")

    def norm_ops(it):
        out = []
        c = 0
        for hf in range(2):
            for i in range(4):
                x = XR(it, hf) + i
                t0, t1 = TT + 2 * (c % 4), TT + 2 * (c % 4) + 1
                c += 1
                out += [f"v_lshlrev_b32 v{t0}, 16, v{x}",
                        f"v_and_b32 v{t1}, 0xffff0000, v{x}",
                        f"v_fma_f32 v{t0}, v{t0}, v{AL+hf}, v{BE+hf}",
                        f"v_fma_f32 v{t1}, v{t1}, v{AL+hf}, v{BE+hf}",
                        f"v_cvt_pk_bf16_f32 v{x}, v{t0}, v{t1}"]
            out.append(f"ds_write_b128 v{22+hf}, {vr(XR(it,hf),4)} offset:{(it&1)*16384}")
        return out
    for o in norm_ops(0):
        a(o)
    stamp(a, 2)

    def reads(it, p):
        st = it % 4
        b = p & 1
        if "noread" in EXP:
            return
        for tt in range(2):
            a(f"ds_read_b128 {vr(XF(b,tt),4)}, v{14+p} offset:{(it&1)*16384 + tt*4096}")
        for ft in range(2):
            ar = (18 if st < 2 else 20) + ft
            off = (st % 2) * 32768 + p * 8192
            a(f"ds_read_b64_tr_b16 {vr(WF(b,ft),2)}, v{ar} offset:{off}")
            a(f"ds_read_b64_tr_b16 {vr(WF(b,ft)+2,2)}, v{ar} offset:{off+2048}")

    def mainloop(vmode):
        L = "V" if vmode else ""
        a("s_waitcnt vmcnt(24) lgkmcnt(0)")
        a("s_cmp_lg_u32 s63, 0")
        a(f"s_cbranch_scc1 K1_W0{L}")
        a("s_waitcnt vmcnt(16)")
        a.label(f"K1_W0{L}")
        a("s_barrier")
        reads(0, 0)
        for it in range(NIT):
            if it >= 1 and it < NIT - 1 and "nobarA" not in EXP:
                a("s_barrier")
            dl = dma_list((it + 3) % 4) if it + 3 < NIT else []
            no = norm_ops(it + 1) if it + 1 < NIT else []
            if "nonorm" in EXP:
                no = []
            if "nowrite" in EXP:
                no = [o for o in no if not o.startswith("ds_write")]
            if "novalu" in EXP:
                no = [o for o in no if o.startswith("ds_write")]
            wr = [o for o in no if o.startswith("ds_write")]
            no = [o for o in no if not o.startswith("ds_write")]
            nper = 5
            if wr:
                no = no[:25] + [wr[0]] + ["s_nop 0"] * 0 + no[25:] + ["s_nop 0"] * 4 + [wr[1]]
            nissued = 0
            for p in range(4):
                nxt = True
                if p < 3:
                    reads(it, p + 1)
                elif it < NIT - 1:
                    reads(it + 1, 0)
                else:
                    nxt = False
                a(f"s_waitcnt lgkmcnt({6 if nxt else 0})")
                b = p & 1
                k = 0
                for ft in range(2):
                    for tt in range(2):
                        if "nomfma" in EXP:
                            pass
                        elif vmode:
                            a(f"v_mfma_f32_32x32x16_bf16 {vr(ACC(ft,tt),16)}, {vr(XF(b,tt),4)}, {vr(WF(b,ft),4)}, {'0' if (it == 0 and p == 0) else vr(ACC(ft,tt),16)}")
                        else:
                            a(f"v_mfma_f32_32x32x16_bf16 {vr(ACC(ft,tt),16)}, {vr(WF(b,ft),4)}, {vr(XF(b,tt),4)}, {'0' if (it == 0 and p == 0) else vr(ACC(ft,tt),16)}")
                        for d in no[:nper]:
                            a(d)
                        no = no[nper:]
                        if dl and k % 2 == 1:
                            a(dl.pop(0))
                            nissued += 1
                        k += 1
                if p == 2 and it < NIT - 1:
                    assert not no
                    newer = (4 if it + 2 < NIT else 0) + nissued
                    if it == 0:
                        newer = 4 + 8 + nissued
                    a(f"s_waitcnt vmcnt({newer}) lgkmcnt(0)")
                    if "nobarB" not in EXP:
                        a("s_barrier")
            assert not dl

    a("""
    s_cmp_eq_u32 s51, 2
    s_cbranch_scc1 K1_LOOPV
    """)
    mainloop(False)
    a("s_branch K1_EPI")
    a.label("K1_LOOPV")
    mainloop(True)
    a.label("K1_EPI")
    stamp(a, 3)
    a(f"""
    v_and_b32 v2, 31, v1
    v_lshrrev_b32 v3, 5, v1
    s_cmp_eq_u32 s54, 0
    s_cbranch_scc1 K1_TAIL
    s_cmp_eq_u32 s51, 3
    s_cbranch_scc1 K1_EPIH
    s_cmp_eq_u32 s51, 2
    s_cbranch_scc1 K1_EPIV
    """)
    qscale = (DH ** -0.5) * math.log2(math.e)
    a(f"""
    s_lshl_b32 s55, s36, 2
    s_lshl_b32 s56, s39, 1
    s_add_u32 s55, s55, s56
    s_mul_i32 s55, s55, 1280
    s_cmp_eq_u32 s51, 1
    s_cselect_b32 s56, {WS_K}, {WS_Q}
    s_cselect_b32 s58, 1.0, {f32bits(qscale)}
    s_add_u32 s55, s55, s56
    s_mov_b32 s57, 81920
    """)
    for ft in range(2):
        for q in range(4):
            a(f"""
            v_lshlrev_b32 v6, 2, v3
            v_add_u32 v6, s53, v6
            v_add_u32 v6, {32*ft+8*q}, v6      ; f0
            v_mul_u32_u24 v7, 3277, v6
            v_lshrrev_b32 v7, 16, v7           ; h
            v_mul_u32_u24 v8, 20, v7
            v_sub_u32 v8, v6, v8               ; d0
            v_mul_lo_u32 v7, v7, s57
            v_lshrrev_b32 v9, 3, v8
            v_lshlrev_b32 v9, 9, v9            ; (d0>>3)*512
            v_and_b32 v10, 7, v8
            v_lshl_add_u32 v9, v10, 1, v9
            v_lshl_add_u32 v9, v2, 4, v9
            v_lshlrev_b32 v10, 3, v2
            v_add_u32 v10, 1024, v10
            v_cmp_lt_u32 vcc, 15, v8
            s_nop 1
            v_cndmask_b32 v9, v9, v10, vcc
            v_add_u32 v9, v9, v7
            """)
            for tt in range(2):
                b = ACC(ft, tt) + 4 * q
                pk = TT + 2 * tt + 4 * (q & 1)
                for i in range(4):
                    a(f"v_mul_f32 v{b+i}, s58, v{b+i}")
                a(f"""
                v_cvt_pk_bf16_f32 v{pk}, v{b}, v{b+1}
                v_cvt_pk_bf16_f32 v{pk+1}, v{b+2}, v{b+3}
                buffer_store_dwordx2 {vr(pk,2)}, v9, s[16:19], s55 offen offset:{tt*1280}
                """)
    a("s_branch K1_TAIL")
    a.label("K1_EPIH")
    c0 = -2.0 * math.sqrt(2.0 / math.pi) * math.log2(math.e)
    c1 = c0 * 0.044715
    BI = XR(0, 0)
    a(f"""
    v_lshlrev_b32 v4, 2, v3
    v_add_u32 v4, s50, v4
    v_lshlrev_b32 v4, 1, v4            ; (col + 4g)*2
    """)
    for ft in range(2):
        for q in range(4):
            a(f"buffer_load_dwordx2 {vr(BI+(ft*4+q)*2,2)}, v4, s[20:23], 0 offen offset:{(32*ft+8*q)*2}")
    a(f"""
    s_mov_b32 s56, {f32bits(c0)}
    s_mov_b32 s57, {f32bits(c1)}
    v_mov_b32 v11, s56
    s_lshl_b32 s55, s36, 2
    s_lshl_b32 s58, s39, 1
    s_add_u32 s55, s55, s58            ; T0
    s_mul_i32 s55, s55, {108*1024}
    s_lshr_b32 s58, s53, 4
    s_lshl_b32 s58, s58, 10
    s_add_u32 s55, s55, s58
    s_add_u32 s55, s55, {WS_H}
    s_add_u32 s59, s55, {108*1024}
    v_lshlrev_b32 v9, 4, v1
    s_waitcnt vmcnt(0)
    """)
    BF = XR(2, 0)
    for ft in range(2):
        for q in range(4):
            for i in range(2):
                src = BI + (ft * 4 + q) * 2 + i
                a(f"v_lshlrev_b32 v{BF+ft*16+q*4+2*i}, 16, v{src}")
                a(f"v_and_b32 v{BF+ft*16+q*4+2*i+1}, 0xffff0000, v{src}")
    for ft in range(2):
        for tt in range(2):
            b = ACC(ft, tt)
            T = XR(6, 0) + 16 * ((ft * 2 + tt) % 2)
            PK = TT + 8 * ((ft * 2 + tt) % 2)
            for r in range(16):
                a(f"v_add_f32 v{b+r}, v{b+r}, v{BF+ft*16+r}")
            for r in range(16):
                a(f"v_mul_f32 v{T+r}, v{b+r}, v{b+r}")
            for r in range(16):
                a(f"v_fma_f32 v{T+r}, v{T+r}, s57, v11")
            for r in range(16):
                a(f"v_mul_f32 v{T+r}, v{T+r}, v{b+r}")
            for r in range(16):
                a(f"v_exp_f32 v{T+r}, v{T+r}")
            for r in range(16):
                a(f"v_add_f32 v{T+r}, 1.0, v{T+r}")
            for r in range(16):
                a(f"v_rcp_f32 v{T+r}, v{T+r}")
            for r in range(16):
                a(f"v_mul_f32 v{T+r}, v{T+r}, v{b+r}")
            for i in range(8):
                a(f"v_cvt_pk_bf16_f32 v{PK+i}, v{T+2*i}, v{T+2*i+1}")
            so = "s55" if tt == 0 else "s59"
            a(f"""
            buffer_store_dwordx4 {vr(PK,4)}, v9, s[16:19], {so} offen offset:{ft*2048}
            buffer_store_dwordx4 {vr(PK+4,4)}, v9, s[16:19], {so} offen offset:{ft*2048+1024}
            """)
    a("s_branch K1_TAIL")
    a.label("K1_EPIV")
    a(f"""
    s_lshl_b32 s55, s36, 3
    s_lshl_b32 s56, s39, 2
    s_add_u32 s55, s55, s56
    s_mul_i32 s55, s55, 640
    s_add_u32 s55, s55, {WS_V}
    s_mov_b32 s57, 81920
    """)
    for ft in range(2):
        a(f"""
        v_add_u32 v6, s53, v2
        v_add_u32 v6, {32*ft}, v6          ; fcol
        v_mul_u32_u24 v7, 3277, v6
        v_lshrrev_b32 v7, 16, v7           ; h
        v_mul_u32_u24 v8, 20, v7
        v_sub_u32 v8, v6, v8               ; d
        v_mul_lo_u32 v7, v7, s57
        v_mul_u32_u24 v9, 320, v3
        v_lshl_add_u32 v9, v8, 4, v9
        v_add_u32 v9, v9, v7
        """)
        for tt in range(2):
            b = ACC(ft, tt)
            PK = TT + 8 * tt + 16 * ft
            for i in range(8):
                a(f"v_cvt_pk_bf16_f32 v{PK+i}, v{b+2*i}, v{b+2*i+1}")
            a(f"""
            buffer_store_dwordx4 {vr(PK,4)}, v9, s[16:19], s55 offen offset:{tt*1280}
            buffer_store_dwordx4 {vr(PK+4,4)}, v9, s[16:19], s55 offen offset:{tt*1280+640}
            """)
    a.label("K1_TAIL")
    stamp(a, 4)
    a("v_lshlrev_b32 v6, 4, v1")
    for f in range(2):
        lab = f"K1_TSM{f}"
        b = TR0 + 8 * f
        a(f"""
        s_cmp_eq_u32 s{62+f}, 0
        s_cbranch_scc1 {lab}
        v_lshl_or_b32 v{b}, v{b+1}, 16, v{b}
        v_lshl_or_b32 v{b+1}, v{b+3}, 16, v{b+2}
        v_lshl_or_b32 v{b+2}, v{b+5}, 16, v{b+4}
        v_lshl_or_b32 v{b+3}, v{b+7}, 16, v{b+6}
        buffer_store_dwordx4 {vr(b,4)}, v6, s[16:19], s{62+f} offen
        """)
        a.label(lab)
    a("s_branch K1_FIN")

    a.label("K1_TRANS")
    trans_issue(a, "B")
    trans_store(a, "B")
    a.label("K1_FIN")
    stamp(a, 5); stamp_rt(a, 6)
    stamp_flush(a, 7, 0, 38, (254, 255))
    a.label("K1_END")
    a("s_endpgm")
    return a.text(), kd("k1_kernel", 256)
```

```python
from common import *

LDS_K2 = 160 * 1024

def gen_mlp_waves(a):
    KS = 108; KW = 27
    PBASE = 32768
    a.label("K2_MLP")
    srd(a, 8, 4, D * 2)
    a(f"""
    s_sub_u32 s38, s38, 8              ; w (0..3)
    s_and_b32 s3, s2, 7
    s_lshr_b32 s36, s2, 3
    s_lshl_b32 s3, s3, 3
    s_lshr_b32 s37, s36, 2
    s_add_u32 s37, s37, s3             ; tt
    s_and_b32 s36, s36, 3              ; nq
    s_mul_i32 s39, s38, {KW}           ; ks0
    s_mul_i32 s46, s36, {5*KS}
    s_add_u32 s46, s46, s39
    s_lshl_b32 s46, s46, 10
    s_add_u32 s40, s46, {WS_W2T}
    """)
    for n in range(1, 5):
        a(f"s_add_u32 s{40+n}, s{39+n}, {KS*1024}")
    a(f"""
    s_mul_i32 s45, s37, {KS}
    s_add_u32 s45, s45, s39
    s_lshl_b32 s45, s45, 10
    s_add_u32 s45, s45, {WS_H}
    """)
    ACC = lambda n: 16 + 16 * n
    DEPTH = 3
    FR = lambda slot, i: 96 + slot * 24 + i * 4
    def loads(ks):
        slot = ks % DEPTH
        sub = ks % 4
        a(f"buffer_load_dwordx4 {vr(FR(slot,0),4)}, v4, s[16:19], s45 offen offset:{sub*1024}")
        for n in range(5):
            a(f"buffer_load_dwordx4 {vr(FR(slot,1+n),4)}, v4, s[16:19], s{40+n} offen offset:{sub*1024}")
        if sub == 3:
            for n in range(6):
                a(f"s_add_u32 s{40+n}, s{40+n}, 4096")
    a("s_barrier")
    for ks in range(DEPTH):
        loads(ks)
    bars = {10: 1, 20: 2}
    for ks in range(KW):
        if ks in bars:
            if bars[ks] == 1:
                stamp(a, 2)
            a("s_barrier")
        inflight = min(KW, ks + DEPTH) - ks
        a(f"s_waitcnt vmcnt({(inflight-1)*6})")
        slot = ks % DEPTH
        for n in range(5):
            a(f"v_mfma_f32_32x32x16_bf16 {vr(ACC(n),16)}, {vr(FR(slot,1+n),4)}, {vr(FR(slot,0),4)}, {'0' if ks == 0 else vr(ACC(n),16)}")
        if ks + DEPTH < KW:
            loads(ks + DEPTH)
    a(f"""
    s_lshl_b32 s46, s37, 2
    s_add_u32 s46, s46, s36
    s_mul_i32 s46, s46, 10240
    s_mul_i32 s48, s38, {S*D*2}
    s_add_u32 s48, s48, s46
    s_add_u32 s48, s48, {WS_P}
    s_add_u32 s49, s48, 4096
    s_add_u32 s50, s48, 8192
    v_lshlrev_b32 v8, 3, v1
    """)
    a.nop(8)
    for q in range(20):
        t = 96 + 2 * (q % 8)
        a(f"""
        v_cvt_pk_bf16_f32 v{t}, v{16+4*q}, v{17+4*q}
        v_cvt_pk_bf16_f32 v{t+1}, v{18+4*q}, v{19+4*q}
        buffer_store_dwordx2 {vr(t,2)}, v8, s[16:19], s{48+q//8} offen offset:{512*(q%8)}
        """)
    a(f"""
    s_mul_i32 s46, s36, 160
    s_mul_i32 s47, s38, 40
    s_add_u32 s46, s46, s47
    v_lshl_add_u32 v7, v3, 2, s46
    v_lshlrev_b32 v7, 1, v7
    """)
    for u in range(5):
        a(f"buffer_load_dwordx2 {vr(112+2*u,2)}, v7, s[8:11], 0 offen offset:{16*u}")
    a("s_waitcnt vmcnt(0)")
    stamp(a, 3)
    a(f"""
    s_barrier                           ; B3
    s_setprio 3
    s_lshl_b32 s46, s37, 2
    s_add_u32 s46, s46, s36
    s_mul_i32 s46, s46, 10240
    s_mul_i32 s47, s38, 2560
    s_add_u32 s46, s46, s47
    s_add_u32 s48, s46, {WS_P}
    s_add_u32 s49, s46, {WS_G}
    """)
    for p in range(4):
        for u in range(5):
            a(f"buffer_load_dwordx2 {vr(16+(p*5+u)*2,2)}, v8, s[16:19], s48 offen offset:{512*u}")
        if p < 3:
            a(f"s_add_u32 s48, s48, {S*D*2}")
    a(f"s_mov_b32 s52, {f32bits(-math.log2(math.e))}")
    a("s_waitcnt vmcnt(0)")
    for u in range(5):
        t = 64 + 20 * (u % 2)
        e = 112 + 2 * u
        for p in range(4):
            for hh in range(2):
                src = 16 + (p * 5 + u) * 2 + hh
                a(f"v_lshlrev_b32 v{t+8*hh+2*p}, 16, v{src}")
                a(f"v_and_b32 v{t+8*hh+2*p+1}, 0xffff0000, v{src}")
        for hh in range(2):
            for j in range(2):
                b = t + 8 * hh + j
                a(f"v_add_f32 v{b}, v{b}, v{b+2}")
                a(f"v_add_f32 v{b+4}, v{b+4}, v{b+6}")
        for hh in range(2):
            for j in range(2):
                b = t + 8 * hh + j
                a(f"v_add_f32 v{b}, v{b}, v{b+4}")
        m = [t, t + 1, t + 8, t + 9]
        a(f"""
        v_cvt_pk_bf16_f32 v{t+2}, v{m[0]}, v{m[1]}
        v_cvt_pk_bf16_f32 v{t+3}, v{m[2]}, v{m[3]}
        v_lshlrev_b32 v{t+16}, 16, v{e}
        v_and_b32 v{t+17}, 0xffff0000, v{e}
        v_lshlrev_b32 v{t+18}, 16, v{e+1}
        v_and_b32 v{t+19}, 0xffff0000, v{e+1}
        v_lshlrev_b32 v{m[0]}, 16, v{t+2}
        v_and_b32 v{m[1]}, 0xffff0000, v{t+2}
        v_lshlrev_b32 v{m[2]}, 16, v{t+3}
        v_and_b32 v{m[3]}, 0xffff0000, v{t+3}
        """)
        for i in range(4):
            a(f"v_add_f32 v{m[i]}, v{m[i]}, v{t+16+i}")
        a(f"""
        v_cvt_pk_bf16_f32 v{t+2}, v{m[0]}, v{m[1]}
        v_cvt_pk_bf16_f32 v{t+3}, v{m[2]}, v{m[3]}
        v_lshlrev_b32 v{m[0]}, 16, v{t+2}
        v_and_b32 v{m[1]}, 0xffff0000, v{t+2}
        v_lshlrev_b32 v{m[2]}, 16, v{t+3}
        v_and_b32 v{m[3]}, 0xffff0000, v{t+3}
        """)
        for i in range(4):
            a(f"v_mul_f32 v{t+16+i}, s52, v{m[i]}")
        for i in range(4):
            a(f"v_exp_f32 v{t+16+i}, v{t+16+i}")
        a("s_nop 0")
        for i in range(4):
            a(f"v_add_f32 v{t+16+i}, 1.0, v{t+16+i}")
        for i in range(4):
            a(f"v_rcp_f32 v{t+16+i}, v{t+16+i}")
        a("s_nop 0")
        for i in range(4):
            a(f"v_mul_f32 v{t+16+i}, v{t+16+i}, v{m[i]}")
        a(f"""
        v_cvt_pk_bf16_f32 v{t+2}, v{t+16}, v{t+17}
        v_cvt_pk_bf16_f32 v{t+3}, v{t+18}, v{t+19}
        buffer_store_dwordx2 {vr(t+2,2)}, v8, s[16:19], s49 offen offset:{512*u}
        """)
    stamp(a, 4)
    a("""
    s_setprio 0
    s_add_u32 s38, s38, 8
    s_barrier                           ; B4
    s_barrier                           ; Bc1
    s_barrier                           ; Bc2
    """)

def gen_k2():
    a = Asm()
    a(khead("k2_kernel"))
    SA, SB = 16, 32
    S_ = [16, 32]
    P_ = [48, 56]
    O_ = [64, 80]
    QL = [96, 104]
    KL = [112, 120]
    VF = [128, 136]
    vKA, vKH, vVA = 8, 9, 10
    MEFF = [12, 13]
    a(f"""
    s_cmp_ge_u32 s2, 256
    s_cbranch_scc1 K2_END
    s_load_dwordx2 s[24:25], s[0:1], {KA_WS}
    s_load_dwordx2 s[4:5], s[0:1], {KA_B2}
    v_and_b32 v1, 63, v0
    v_lshrrev_b32 v2, 6, v0
    s_and_b32 s36, s2, 31              ; head
    s_lshr_b32 s37, s2, 5              ; qb
    v_readfirstlane_b32 s38, v2        ; w
    v_and_b32 v2, 31, v1               ; n
    v_lshrrev_b32 v3, 5, v1            ; g
    v_lshlrev_b32 v4, 4, v1            ; l*16
    v_lshlrev_b32 v5, 3, v2            ; n*8
    s_and_b32 s39, s38, 3              ; qg
    s_lshr_b32 s40, s38, 2             ; kh
    s_mul_i32 s41, s36, 81920
    s_waitcnt lgkmcnt(0)
    """)
    srd(a, 16, 24, WS_SIZE)
    stamp(a, 0); stamp_rt(a, 1)
    a("""
    s_cmp_ge_u32 s38, 8
    s_cbranch_scc1 K2_MLP
    s_setprio 2
    """)
    a(f"""
    s_lshl_b32 s42, s37, 3
    s_lshl_b32 s43, s39, 1
    s_add_u32 s42, s42, s43            ; TQ0
    s_mul_i32 s42, s42, 1280
    s_add_u32 s42, s42, s41
    s_add_u32 s42, s42, {WS_Q}
    buffer_load_dwordx4 {vr(QL[0],4)}, v4, s[16:19], s42 offen
    buffer_load_dwordx2 {vr(QL[0]+4,2)}, v5, s[16:19], s42 offen offset:1024
    buffer_load_dwordx4 {vr(QL[1],4)}, v4, s[16:19], s42 offen offset:1280
    buffer_load_dwordx2 {vr(QL[1]+4,2)}, v5, s[16:19], s42 offen offset:{1280+1024}
    """)
    a(f"""
    s_lshr_b32 s43, s38, 1             ; region
    s_and_b32 s44, s43, 1
    s_mul_i32 s44, s44, 40960
    s_and_b32 s45, s38, 1
    s_mul_i32 s45, s45, 5120
    s_add_u32 s44, s44, s45
    s_lshr_b32 s43, s43, 1             ; isV
    s_mul_i32 s45, s43, 81920
    s_add_u32 s45, s45, s44
    s_cmp_eq_u32 s43, 1
    s_mov_b32 s46, {WS_K}
    s_cselect_b32 s46, {WS_V}, s46
    s_add_u32 s46, s46, s41
    s_add_u32 s46, s46, s44
    """)
    for c in range(4):
        a(f"""
        s_add_u32 m0, s45, {c*10240}
        s_add_u32 s47, s46, {c*10240}
        buffer_load_dwordx4 v4, s[16:19], s47 offen lds
        buffer_load_dwordx4 v4, s[16:19], s47 offen offset:1024 lds
        buffer_load_dwordx4 v4, s[16:19], s47 offen offset:2048 lds
        buffer_load_dwordx4 v4, s[16:19], s47 offen offset:3072 lds
        s_add_u32 m0, s45, {c*10240+4096}
        s_add_u32 s47, s46, {c*10240+4096}
        buffer_load_dwordx4 v4, s[16:19], s47 offen lds
        """)
    a(f"""
    s_mul_i32 s43, s40, 40960
    v_add_u32 v{vKA}, s43, v4                 ; K lo
    v_add_u32 v{vKH}, s43, v5
    v_add_u32 v{vKH}, 1024, v{vKH}            ; K hi
    v_mul_u32_u24 v6, 320, v3
    v_lshl_add_u32 v6, v2, 4, v6
    s_add_u32 s43, s43, 81920
    v_add_u32 v{vVA}, s43, v6                 ; V
    v_mov_b32 v14, v{vKA}
    v_mov_b32 v15, v{vKH}
    v_mov_b32 v11, v{vVA}
    v_cmp_gt_u32 vcc, 20, v2
    s_mov_b64 s[48:49], vcc
    ; g==0 mask
    v_cmp_eq_u32 vcc, 0, v3
    s_mov_b64 s[50:51], vcc
    """)
    for b in range(2):
        a(f"""
        v_mov_b32 v{KL[b]+6}, 0x3f803f80
        v_mov_b32 v{KL[b]+7}, 0x00003f80
        """)
        for i in range(8):
            a(f"v_mov_b32 v{VF[b]+i}, 0x3f803f80")
    a("""
    s_mov_b32 s52, 0
    s_waitcnt vmcnt(15)
    s_barrier
    """)
    stamp(a, 2)
    a(f"""
    s_mov_b64 exec, s[50:51]
    s_not_b64 exec, exec
    v_mov_b32 v{QL[0]+4}, 0
    v_mov_b32 v{QL[0]+5}, 0
    v_mov_b32 v{QL[1]+4}, 0
    v_mov_b32 v{QL[1]+5}, 0
    s_mov_b64 exec, -1
    v_mov_b32 v{QL[0]+6}, 0
    v_mov_b32 v{QL[0]+7}, 0
    v_mov_b32 v{QL[1]+6}, 0
    v_mov_b32 v{QL[1]+7}, 0
    """)
    def kread(buf, off, ka=vKA, kh=vKH):
        a(f"ds_read_b128 {vr(KL[buf],4)}, v{ka} offset:{off}")
        a(f"ds_read_b64 {vr(KL[buf]+4,2)}, v{kh} offset:{off}")
    def vread(buf, off):
        a("s_mov_b64 exec, s[48:49]")
        a(f"ds_read_b128 {vr(VF[buf],4)}, v{vVA} offset:{off}")
        a(f"ds_read_b128 {vr(VF[buf]+4,4)}, v{vVA} offset:{off+640}")
        a("s_mov_b64 exec, -1")
    def qk(u, buf):
        return [f"v_mfma_f32_32x32x16_bf16 {vr(S_[u],16)}, {vr(KL[buf],4)}, {vr(QL[u],4)}, 0",
                f"v_mfma_f32_32x32x16_bf16 {vr(S_[u],16)}, {vr(KL[buf]+4,4)}, {vr(QL[u]+4,4)}, {vr(S_[u],16)}"]
    def pv(u, buf, j):
        return f"v_mfma_f32_32x32x16_bf16 {vr(O_[u],16)}, {vr(VF[buf]+4*j,4)}, {vr(P_[u]+4*j,4)}, {vr(O_[u],16)}"
    def maxred(u, dst, first):
        s = S_[u]
        if first:
            a(f"v_max3_f32 v{dst}, v{s}, v{s+1}, v{s+2}")
            rest = list(range(3, 16))
        else:
            rest = list(range(0, 16))
        while len(rest) >= 2:
            a(f"v_max3_f32 v{dst}, v{dst}, v{s+rest[0]}, v{s+rest[1]}")
            rest = rest[2:]
        if rest:
            a(f"v_max_f32 v{dst}, v{dst}, v{s+rest[0]}")

    kread(0, 0)
    a("s_waitcnt lgkmcnt(0)")
    for u in range(2):
        for m in qk(u, 0):
            a(m)
    a.nop(16)
    for u in range(2):
        maxred(u, 144 + u, True)
    a.label("K2_SETM")
    for u in range(2):
        m = 144 + u
        a(f"""
        v_mov_b32 v146, v{m}
        s_nop 1
        v_permlane32_swap_b32 v{m}, v146
        s_nop 1
        v_max_f32 v{m}, v{m}, v146
        v_cvt_pk_bf16_f32 v147, v{m}, v{m}
        v_lshlrev_b32 v147, 16, v147             ; hi
        v_sub_f32 v148, v{m}, v147
        v_cvt_pk_bf16_f32 v149, v148, v148
        v_lshlrev_b32 v149, 16, v149             ; mid
        v_sub_f32 v148, v148, v149
        v_cvt_pk_bf16_f32 v150, v148, v148
        v_lshlrev_b32 v150, 16, v150             ; lo
        v_add_f32 v{MEFF[u]}, v147, v149
        v_add_f32 v{MEFF[u]}, v{MEFF[u]}, v150
        v_cvt_pk_bf16_f32 v147, -v147, -v149
        v_mov_b32 v151, 0
        v_cvt_pk_bf16_f32 v150, -v150, v151
        s_mov_b64 exec, s[50:51]
        v_mov_b32 v{QL[u]+6}, v147
        v_mov_b32 v{QL[u]+7}, v150
        s_mov_b64 exec, -1
        """)
    for u in range(2):
        for r in range(16):
            a(f"v_mov_b32 v{O_[u]+r}, 0")
    a(f"""
    v_mov_b32 v{vKA}, v14
    v_mov_b32 v{vKH}, v15
    v_mov_b32 v{vVA}, v11
    s_mov_b32 s53, 0
    """)
    kread(0, 0)
    vread(0, 0)
    a("s_waitcnt lgkmcnt(0)")
    for m in qk(0, 0):
        a(m)

    def ephase(u, mf_start, mf_mid, mf_end):
        s, p = S_[u], P_[u]
        seq = []
        for i in range(8):
            seq.append(f"v_exp_f32 v{s+2*i}, v{s+2*i}")
            seq.append(f"v_exp_f32 v{s+2*i+1}, v{s+2*i+1}")
            if i >= 1:
                seq.append(f"v_cvt_pk_bf16_f32 v{p+i-1}, v{s+2*i-2}, v{s+2*i-1}")
        seq.append("s_nop 0")
        seq.append(f"v_cvt_pk_bf16_f32 v{p+7}, v{s+14}, v{s+15}")
        out = []
        out.append(mf_start[0])
        for k, ins in enumerate(seq):
            out.append(ins)
            if k == 4:
                out.append(mf_start[1])
            if ins.startswith(f"v_cvt_pk_bf16_f32 v{p+3},"):
                midpos = len(out) + 2
        out.insert(midpos, mf_mid)
        out.append("s_nop 1")
        out.append(mf_end)
        for o in out:
            a(o)

    stamp(a, 3)
    a.label("K2_CHUNK")
    for t in range(8):
        buf = t & 1
        nb = buf ^ 1
        if t == 7:
            a(f"""
            s_cmp_lg_u32 s52, 0
            s_cbranch_scc1 K2_NOBAR
            s_cmp_eq_u32 s53, 0
            s_cbranch_scc0 K2_W1
            s_waitcnt vmcnt(10)
            s_branch K2_WB
            """)
            a.label("K2_W1")
            a(f"""
            s_cmp_eq_u32 s53, 1
            s_cbranch_scc0 K2_W2
            s_waitcnt vmcnt(5)
            s_branch K2_WB
            """)
            a.label("K2_W2")
            a("s_waitcnt vmcnt(0)")
            a.label("K2_WB")
            a("s_barrier")
            a.label("K2_NOBAR")
        kread(nb, (t + 1) * 1280)
        a("s_waitcnt lgkmcnt(2)")
        ephase(0, qk(1, buf), pv(0, buf, 0), pv(0, buf, 1))
        a("s_waitcnt lgkmcnt(0)")
        vread(nb, (t + 1) * 1280)
        ephase(1, qk(0, nb), pv(1, buf, 0), pv(1, buf, 1))
    a(f"""
    v_add_u32 v{vKA}, 10240, v{vKA}
    v_add_u32 v{vKH}, 10240, v{vKH}
    v_add_u32 v{vVA}, 10240, v{vVA}
    s_add_u32 s53, s53, 1
    s_cmp_lt_u32 s53, 4
    s_cbranch_scc1 K2_CHUNK
    s_waitcnt lgkmcnt(0)
    """)
    a.nop(16)
    stamp(a, 4)
    a(f"""
    s_cmp_lg_u32 s52, 0
    s_cbranch_scc1 K2_COMBINE
    s_mov_b32 s54, {f32bits(2.0**-30)}
    s_mov_b32 s55, {f32bits(2.0**30)}
    v_cmp_le_f32 s[56:57], s54, v{O_[0]+12}
    v_cmp_ge_f32 s[58:59], s55, v{O_[0]+12}
    s_and_b64 s[56:57], s[56:57], s[58:59]
    v_cmp_le_f32 s[58:59], s54, v{O_[1]+12}
    s_and_b64 s[56:57], s[56:57], s[58:59]
    v_cmp_ge_f32 s[58:59], s55, v{O_[1]+12}
    s_and_b64 s[56:57], s[56:57], s[58:59]
    s_cmp_eq_u64 s[56:57], -1
    s_cbranch_scc1 K2_COMBINE
    """)
    a(f"""
    s_mov_b32 s52, 1
    v_mov_b32 v{QL[0]+6}, 0
    v_mov_b32 v{QL[0]+7}, 0
    v_mov_b32 v{QL[1]+6}, 0
    v_mov_b32 v{QL[1]+7}, 0
    v_mov_b32 v{vKA}, v14
    v_mov_b32 v{vKH}, v15
    v_mov_b32 v144, 0xff800000
    v_mov_b32 v145, 0xff800000
    s_mov_b32 s53, 0
    """)
    a.label("K2_MAXLOOP")
    kread(0, 0)
    a("s_waitcnt lgkmcnt(0)")
    for u in range(2):
        for m in qk(u, 0):
            a(m)
    a.nop(16)
    for u in range(2):
        maxred(u, 144 + u, False)
    a(f"""
    v_add_u32 v{vKA}, 1280, v{vKA}
    v_add_u32 v{vKH}, 1280, v{vKH}
    s_add_u32 s53, s53, 1
    s_cmp_lt_u32 s53, 32
    s_cbranch_scc1 K2_MAXLOOP
    s_branch K2_SETM
    """)
    a.label("K2_COMBINE")
    a(f"""
    s_barrier
    s_lshl_b32 s43, s39, 13            ; qg*8192
    v_add_u32 v6, s43, v4              ; + l*16
    s_cmp_eq_u32 s40, 0
    s_cbranch_scc1 K2_RECV
    """)
    for u in range(2):
        a(f"v_mov_b32 v{O_[u]+13}, v{MEFF[u]}")
        for q in range(4):
            a(f"ds_write_b128 v6, {vr(O_[u]+4*q,4)} offset:{u*4096+q*1024}")
    a("""
    s_waitcnt lgkmcnt(0)
    s_barrier
    s_branch K2_FIN
    """)
    a.label("K2_RECV")
    a("s_barrier")
    for u in range(2):
        for q in range(4):
            a(f"ds_read_b128 {vr(S_[u]+4*q,4)}, v6 offset:{u*4096+q*1024}")
    a(f"""
    s_lshl_b32 s42, s37, 3
    s_lshl_b32 s43, s39, 1
    s_add_u32 s42, s42, s43            ; T0
    s_mul_i32 s42, s42, {40*1024}
    s_add_u32 s42, s42, {WS_O}
    s_lshr_b32 s43, s36, 2
    s_add_u32 s43, s43, 32
    s_lshl_b32 s43, s43, 10
    s_lshr_b32 s44, s36, 1
    s_and_b32 s44, s44, 1
    s_lshl_b32 s44, s44, 9
    s_add_u32 s43, s43, s44
    s_and_b32 s44, s36, 1
    s_lshl_b32 s44, s44, 3
    s_add_u32 s43, s43, s44
    s_add_u32 s43, s43, s42
    s_lshl_b32 s44, s36, 10
    s_add_u32 s42, s42, s44
    v_lshlrev_b32 v7, 4, v2            ; n*16
    s_waitcnt lgkmcnt(0)
    """)
    for u in range(2):
        o, s = O_[u], S_[u]
        a(f"""
        v_max_f32 v144, v{MEFF[u]}, v{s+13}
        v_sub_f32 v145, v{MEFF[u]}, v144
        v_sub_f32 v146, v{s+13}, v144
        v_exp_f32 v145, v145
        v_exp_f32 v146, v146
        s_nop 0
        v_mul_f32 v147, v{o+12}, v145
        v_fma_f32 v147, v{s+12}, v146, v147
        v_rcp_f32 v147, v147
        s_nop 0
        v_mul_f32 v145, v145, v147
        v_mul_f32 v146, v146, v147
        """)
        for r in range(12):
            a(f"v_mul_f32 v{o+r}, v{o+r}, v145")
            a(f"v_fma_f32 v{o+r}, v{s+r}, v146, v{o+r}")
        for i in range(6):
            a(f"v_cvt_pk_bf16_f32 v{148+i}, v{o+2*i}, v{o+2*i+1}")
        a(f"""
        buffer_store_dwordx4 v[148:151], v4, s[16:19], s42 offen
        s_mov_b64 exec, s[50:51]
        buffer_store_dwordx2 v[152:153], v7, s[16:19], s43 offen
        s_mov_b64 exec, -1
        s_add_u32 s42, s42, {40*1024}
        s_add_u32 s43, s43, {40*1024}
        """)
    a("s_branch K2_FIN")
    gen_mlp_waves(a)
    a.label("K2_FIN")
    stamp(a, 5); stamp_rt(a, 6)
    stamp_flush(a, 8, 1, 38, (154, 155))
    a.label("K2_END")
    a("s_endpgm")
    return a.text(), kd("k2_kernel", 168)
```

```python
from common import *

LDS_K3 = 160 * 1024

def gen_k3():
    name = "k3_kernel"
    KS = 40; KW = 5
    RS = 336
    a = Asm()
    a(khead(name))
    a(f"""
    s_cmp_ge_u32 s2, 256
    s_cbranch_scc1 K3_END
    s_load_dwordx2 s[24:25], s[0:1], {KA_WS}
    s_load_dwordx2 s[4:5], s[0:1], {KA_X}
    s_load_dwordx2 s[6:7], s[0:1], {KA_OUT}
    v_and_b32 v1, 63, v0
    v_lshrrev_b32 v2, 6, v0
    s_and_b32 s3, s2, 7
    s_lshr_b32 s36, s2, 3
    v_readfirstlane_b32 s38, v2        ; w
    s_lshl_b32 s3, s3, 3
    s_lshr_b32 s37, s36, 2
    s_add_u32 s37, s37, s3             ; tt
    s_and_b32 s36, s36, 3              ; nq
    v_and_b32 v2, 31, v1
    v_lshrrev_b32 v3, 5, v1
    v_lshlrev_b32 v4, 4, v1            ; l*16
    v_lshlrev_b32 v5, 3, v1            ; l*8
    s_mul_i32 s39, s38, {KW}           ; ks0
    s_mul_i32 s46, s36, {5*KS}
    s_add_u32 s46, s46, s39
    s_lshl_b32 s46, s46, 10
    s_add_u32 s40, s46, {WS_WOT}
    """)
    for n in range(1, 5):
        a(f"s_add_u32 s{40+n}, s{39+n}, {KS*1024}")
    a(f"""
    s_mul_i32 s45, s37, {KS}
    s_add_u32 s45, s45, s39
    s_lshl_b32 s45, s45, 10
    s_add_u32 s45, s45, {WS_O}
    ; stage-B chunk mapping: c = tid (+512 for waves 0,1): t = c/20, j = c%20
    v_mul_u32_u24 v11, 3277, v0
    v_lshrrev_b32 v11, 16, v11         ; t
    v_mul_u32_u24 v12, 20, v11
    v_sub_u32 v12, v0, v12             ; j
    v_add_u32 v13, 512, v0
    v_mul_u32_u24 v14, 3277, v13
    v_lshrrev_b32 v14, 16, v14         ; t2
    v_mul_u32_u24 v15, 20, v14
    v_sub_u32 v15, v13, v15            ; j2
    s_lshl_b32 s47, s37, 5
    s_mul_i32 s46, s36, 320
    s_mul_i32 s47, s47, 1280
    s_add_u32 s53, s46, s47
    v_mul_u32_u24 v8, 1280, v11
    v_lshl_add_u32 v8, v12, 4, v8
    v_mul_u32_u24 v9, 1280, v14
    v_lshl_add_u32 v9, v15, 4, v9
    v_mul_u32_u24 v11, {RS}, v11
    v_lshl_add_u32 v11, v12, 4, v11
    v_mul_u32_u24 v14, {RS}, v14
    v_lshl_add_u32 v14, v15, 4, v14
    s_waitcnt lgkmcnt(0)
    """)
    srd(a, 16, 24, WS_SIZE)
    stamp(a, 0); stamp_rt(a, 1)
    srd(a, 8, 4, S * D * 2)
    srd(a, 12, 6, S * D * 2)
    ACC = lambda n: 16 + 16 * n
    FR = lambda ks, i: 96 + ks * 24 + i * 4
    for ks in range(KW):
        if ks < 4:
            a(f"buffer_load_dwordx4 {vr(FR(ks,0),4)}, v4, s[16:19], s45 offen offset:{ks*1024}")
        else:
            a(f"s_add_u32 s46, s45, 4096")
            a(f"buffer_load_dwordx4 {vr(FR(ks,0),4)}, v4, s[16:19], s46 offen")
        for n in range(5):
            if ks < 4:
                a(f"buffer_load_dwordx4 {vr(FR(ks,1+n),4)}, v4, s[16:19], s{40+n} offen offset:{ks*1024}")
            else:
                a(f"s_add_u32 s46, s{40+n}, 4096")
                a(f"buffer_load_dwordx4 {vr(FR(ks,1+n),4)}, v4, s[16:19], s46 offen")
    a(f"""
    s_lshl_b32 s46, s37, 2
    s_add_u32 s46, s46, s36
    s_mul_i32 s46, s46, 10240
    s_lshl_b32 s47, s38, 9
    s_add_u32 s46, s46, s47
    s_add_u32 s48, s46, {WS_G}
    """)
    EP = 216
    nep = 0
    for u in range(3):
        a(f"s_add_u32 s46, s48, {u*4096}")
        a(f"buffer_load_dwordx2 {vr(EP+2*u,2)}, v5, s[16:19], s46 offen")
        nep += 1
    a(f"buffer_load_dwordx4 v[246:249], v8, s[8:11], s53 offen")
    a(f"buffer_load_dwordx4 v[250:253], v9, s[8:11], s53 offen")
    nep += 2
    for ks in range(KW):
        a(f"s_waitcnt vmcnt({(KW-1-ks)*6 + nep})")
        for n in range(5):
            a(f"v_mfma_f32_32x32x16_bf16 {vr(ACC(n),16)}, {vr(FR(ks,1+n),4)}, {vr(FR(ks,0),4)}, {'0' if ks == 0 else vr(ACC(n),16)}")
    a(f"""
    s_mul_i32 s46, s38, {20*1024}
    v_add_u32 v6, s46, v4
    """)
    a.nop(14)
    stamp(a, 2)
    for q in range(20):
        a(f"ds_write_b128 v6, {vr(16+4*q,4)} offset:{q*1024}")
    a(f"""
    s_lshl_b32 s46, s38, 10
    v_add_u32 v6, s46, v4
    v_add_u32 v10, {60*1024}, v6
    v_add_u32 v12, {120*1024}, v6
    s_mov_b32 s52, {f32bits(-math.log2(math.e))}
    s_waitcnt vmcnt(2)
    """)
    for u in range(3):
        t = 120 + 32 * u
        e = EP + 2 * u
        a(f"""
        v_lshlrev_b32 v{t+16}, 16, v{e}
        v_and_b32 v{t+17}, 0xffff0000, v{e}
        v_lshlrev_b32 v{t+18}, 16, v{e+1}
        v_and_b32 v{t+19}, 0xffff0000, v{e+1}
        """)
    a("""
    s_waitcnt lgkmcnt(0)
    s_barrier
    """)
    R = lambda u, src: 16 + (u * 8 + src) * 4
    for u in range(3):
        for src in range(8):
            base = (6, 10, 12)[src // 3]
            off = (src % 3) * 20480 + u * 8192
            a(f"ds_read_b128 {vr(R(u,src),4)}, v{base} offset:{off}")
    a(f"""
    v_mul_u32_u24 v13, {RS}, v2
    v_lshl_add_u32 v13, v3, 3, v13
    s_lshl_b32 s46, s38, 4
    v_add_u32 v13, s46, v13
    s_waitcnt lgkmcnt(0)
    s_barrier
    """)
    stamp(a, 3)
    for u in range(3):
        for st in (4, 2, 1):
            for src in range(st):
                for i in range(4):
                    a(f"v_add_f32 v{R(u,src)+i}, v{R(u,src)+i}, v{R(u,src+st)+i}")
    for u in range(3):
        r = R(u, 0)
        t = 120 + 32 * u
        a(f"""
        v_cvt_pk_bf16_f32 v{t+4}, v{r}, v{r+1}
        v_cvt_pk_bf16_f32 v{t+5}, v{r+2}, v{r+3}
        v_lshlrev_b32 v{r}, 16, v{t+4}
        v_and_b32 v{r+1}, 0xffff0000, v{t+4}
        v_lshlrev_b32 v{r+2}, 16, v{t+5}
        v_and_b32 v{r+3}, 0xffff0000, v{t+5}
        """)
        for i in range(4):
            a(f"v_mul_f32 v{r+i}, v{r+i}, v{t+16+i}")
        a(f"""
        v_cvt_pk_bf16_f32 v{t+2}, v{r}, v{r+1}
        v_cvt_pk_bf16_f32 v{t+3}, v{r+2}, v{r+3}
        """)
        if u == 2:
            a("""
            s_cmp_ge_u32 s38, 4
            s_cbranch_scc1 K3_SKIPW
            """)
        a(f"ds_write_b64 v13, {vr(t+2,2)} offset:{128*u}")
    a.label("K3_SKIPW")
    a(f"""
    s_waitcnt lgkmcnt(0)
    s_barrier
    ds_read_b128 v[16:19], v11
    ds_read_b128 v[20:23], v14
    s_waitcnt vmcnt(0)
    """)
    def fin(src, x, dstoff, waitn):
        a(f"s_waitcnt lgkmcnt({waitn})")
        for i in range(4):
            a(f"""
            v_lshlrev_b32 v32, 16, v{src+i}
            v_and_b32 v33, 0xffff0000, v{src+i}
            v_lshlrev_b32 v34, 16, v{x+i}
            v_and_b32 v35, 0xffff0000, v{x+i}
            v_add_f32 v32, v32, v34
            v_add_f32 v33, v33, v35
            v_cvt_pk_bf16_f32 v{src+i}, v32, v33
            """)
        a(f"buffer_store_dwordx4 {vr(src,4)}, v{dstoff}, s[12:15], s53 offen")
    fin(16, 246, 8, 1)
    a("""
    s_cmp_ge_u32 s38, 2
    s_cbranch_scc1 K3_FIN
    """)
    fin(20, 250, 9, 0)
    a.label("K3_FIN")
    stamp(a, 5); stamp_rt(a, 6)
    stamp_flush(a, 7, 2, 38, (254, 255))
    a.label("K3_END")
    a("s_endpgm")
    return a.text(), kd(name, 256)
```

```python
import sys
from common import *
from k1 import gen_k1, LDS_K1
from k2 import gen_k2, LDS_K2
from k3 import gen_k3, LDS_K3

NAME = "recurrent_scan__softmax_full_mha__mixer_channel_mlp__prompt"
ref = open(f"cdna_kernels/{NAME}.s.ref").read().split("\n")
hdr = [l for l in ref if l.startswith(";") and "@launch" not in l and "Override launch" not in l and "grid=ceil" not in l]
launches = [
    ("k1_kernel", 256, 512, LDS_K1),
    ("k2_kernel", 256, 768, LDS_K2),
    ("k3_kernel", 256, 512, LDS_K3),
]
out = "\n".join(hdr) + "\n"
for k, g, b, l in launches:
    out += f"; @launch kernel={k} grid=({g},1,1) block=({b},1,1) lds={l}\n"
out += '.amdgcn_target "amdgcn-amd-amdhsa--gfx950"\n.text\n'
parts = [gen_k1(), gen_k2(), gen_k3()]
for t, _ in parts:
    out += t
out += '.section .rodata,"a"\n'
for _, k in parts:
    out += k
dst = sys.argv[1] if len(sys.argv) > 1 else f"cdna_kernels/{NAME}.s"
open(dst, "w").write(out)
print("wrote", dst, len(out))
```
